```python
import torch

def _softmax(x, axis=-1):
    return torch.softmax(x, dim=axis)
def _gelu(x):
    return torch.nn.functional.gelu(x, approximate="tanh")
def _silu(x):
    return torch.nn.functional.silu(x)
def _sigmoid(x):
    return torch.sigmoid(x)
def _layernorm(x, axis=-1, eps=1e-5):
    m = x.mean(dim=axis, keepdim=True)
    v = x.var(dim=axis, keepdim=True, unbiased=False)
    return (x - m) / torch.sqrt(v + eps)
def _scatter_add(tgt, idx, src, axis=0):
    return tgt.clone().index_add_(axis, idx, src)
def _segment_sum(src, seg, n):
    out = torch.zeros((n,) + src.shape[1:], dtype=src.dtype)
    return out.index_add_(0, seg, src)
def _pad(x, pw):
    flat = tuple(v for pair in reversed(pw) for v in pair)
    return torch.nn.functional.pad(x, flat)

kernel_name = 'standalone__weight_only_int_quip_2__prompt'

def setup_inputs():

    _w = (lambda a: (lambda t: t.to(torch.bfloat16) if t.is_floating_point() else t)(torch.as_tensor(a)))
    B, S, D, F = 1, 2048, 576, 4608
    nbits = max(2, min(4, int(2)))
    G = -1 if -1 > 0 else D
    D = (D // G) * G
    ng = D // G
    qmax = 1 << nbits
    qw = torch.randint(0, qmax, (D, F)).to(torch.int32)
    zp = torch.randint(0, qmax, (ng, F)).to(float)
    sc = torch.abs((lambda *s: torch.randn(*s, dtype=torch.bfloat16) * 0.05)(ng, F)).to(float) * 0.1 + 0.02
    return {
        "x": _w((lambda *s: torch.randn(*s, dtype=torch.bfloat16) * 0.05)(B, S, D)),
        "qw": _w(qw),
        "scales": _w(sc),
        "zeros": _w(zp),
    }

def reference(x, qw, scales, zeros):
    B, S, D = x.shape
    ng, F = scales.shape
    G = D // ng
    s = (lambda x, n, axis: torch.repeat_interleave(x, n, dim=axis))(scales, G, axis=0)
    z = (lambda x, n, axis: torch.repeat_interleave(x, n, dim=axis))(zeros, G, axis=0)
    w = ((lambda x, dt: x.to(dt))(qw, x.dtype) - z) * s
    return torch.einsum("bsd,df->bsf", x, w)
```

```python
import sys, argparse

KN = 'standalone__weight_only_int_quip_2__prompt_kernel'
X_BYTES, QW_BYTES, SC_BYTES, OUT_BYTES, WS_BYTES = 2359296, 10616832, 9216, 18874368, 268435456
WS_DATA = 4096
WS_STAMP = 0x200000
LDS_BYTES = 73728

S_X, S_QW, S_SC, S_ZP, S_OUT, S_WS, S_CODE = 20, 24, 28, 32, 36, 40, 44
S_W, S_RB, S_CB, S_T0, S_T1, S_TAG, S_N, S_CNT = 48, 49, 50, 51, 52, 53, 54, 55
S_O = 56
S_OH = 60
S_WB, S_WH = 62, 63
S_L0 = 64
S_SCB, S_SCH = 67, 68
S_U, S_US, S_ZS, S_HAS, S_P, S_UU = 69, 70, 71, 72, 73, 74
S_SCL = 75
S_STAMP = 76
S_T2, S_T3 = 92, 93
S_NOFF = 94
V_XX = 4
V_SB = (36, 84)
V_AC = (132, 164)
V_F = (196, 204)
V_SR = 212
V_SU = 216
V_O = (224, 228)
V_XB = 240
V_S, V_OO, V_C, V_Q, V_Z, V_BAD, V_LANE, V_I, V_G = 244, 245, 246, 247, 248, 249, 250, 251, 252
V_TMP = 232
V_DUMMY = 255


class Gen:
    def __init__(self, a):
        self.a = a
        self.L = []
        self.vm = []
        self.retry = []
        self.nstamp = 0

    def e(self, s):
        self.L.append(s)

    def vmem(self, s, tag):
        self.L.append(s)
        self.vm.append(tag)

    def wait_vm(self, tag):
        idx = max(i for i, t in enumerate(self.vm) if t == tag)
        n = len(self.vm) - 1 - idx
        assert n <= 63
        return 's_waitcnt vmcnt(%d)' % n

    def stamp(self, k):
        if self.a.stamps:
            self.e('s_memrealtime s[%d:%d]' % (S_STAMP + 2 * k, S_STAMP + 2 * k + 1))

    def srd(self, r, p, n):
        self.e('s_mov_b32 s%d, s%d' % (r, p))
        self.e('s_mov_b32 s%d, s%d' % (r + 1, p + 1))
        self.e('s_mov_b32 s%d, %d' % (r + 2, n))
        self.e('s_mov_b32 s%d, 0x00020000' % (r + 3))

    def prologue(self, name, do_prod, do_cons):
        a, e = self.a, self.e
        e('s_cmp_ge_u32 s2, 256')
        e('s_cbranch_scc1 %s_done' % name)
        e('s_getpc_b64 s[%d:%d]' % (S_CODE, S_CODE + 1))
        e('%s_pc:' % name)
        e('s_load_dwordx8 s[4:11], s[0:1], 0')
        e('s_load_dwordx4 s[12:15], s[0:1], 32')
        e('s_load_dwordx2 s[16:17], s[0:1], 48')
        self.stamp(0)
        e('s_mov_b32 s%d, %s_end-%s_pc' % (S_CODE + 2, name, name))
        e('s_mov_b32 s%d, 0x00020000' % (S_CODE + 3))
        e('v_lshlrev_b32 v1, 7, v0')
        if a.pf:
            self.vmem('buffer_load_dword v%d, v1, s[%d:%d], 0 offen' % (V_DUMMY, S_CODE, S_CODE + 3), 'pf')
        e('v_lshrrev_b32 v2, 6, v0')
        e('v_and_b32 v%d, 63, v0' % V_LANE)
        e('v_readfirstlane_b32 s%d, v2' % S_W)
        e('v_and_b32 v%d, 15, v%d' % (V_I, V_LANE))
        e('v_lshrrev_b32 v%d, 4, v%d' % (V_G, V_LANE))
        e('s_and_b32 s%d, s2, 7' % S_T0)
        e('s_lshr_b32 s%d, s2, 3' % S_T1)
        if a.R == 8:
            e('s_and_b32 s%d, s%d, 3' % (S_RB, S_T0))
            e('s_lshl_b32 s%d, s%d, 3' % (S_RB, S_RB))
            e('s_and_b32 s%d, s%d, 7' % (S_T2, S_T1))
            e('s_add_u32 s%d, s%d, s%d' % (S_RB, S_RB, S_T2))
            e('s_lshr_b32 s%d, s%d, 2' % (S_CB, S_T0))
            e('s_lshl_b32 s%d, s%d, 2' % (S_CB, S_CB))
            e('s_lshr_b32 s%d, s%d, 3' % (S_T2, S_T1))
            e('s_add_u32 s%d, s%d, s%d' % (S_CB, S_CB, S_T2))
        elif a.R == 4:
            e('s_lshl_b32 s%d, s%d, 2' % (S_RB, S_T0))
            e('s_and_b32 s%d, s%d, 3' % (S_T2, S_T1))
            e('s_add_u32 s%d, s%d, s%d' % (S_RB, S_RB, S_T2))
            e('s_lshr_b32 s%d, s%d, 2' % (S_CB, S_T1))
        elif a.R == 16:
            e('s_and_b32 s%d, s%d, 1' % (S_RB, S_T0))
            e('s_lshl_b32 s%d, s%d, 4' % (S_RB, S_RB))
            e('s_and_b32 s%d, s%d, 15' % (S_T2, S_T1))
            e('s_add_u32 s%d, s%d, s%d' % (S_RB, S_RB, S_T2))
            e('s_lshr_b32 s%d, s%d, 1' % (S_CB, S_T0))
            e('s_lshl_b32 s%d, s%d, 1' % (S_CB, S_CB))
            e('s_lshr_b32 s%d, s%d, 4' % (S_T2, S_T1))
            e('s_add_u32 s%d, s%d, s%d' % (S_CB, S_CB, S_T2))
        elif a.R == 32:
            e('s_mov_b32 s%d, s%d' % (S_RB, S_T1))
            e('s_mov_b32 s%d, s%d' % (S_CB, S_T0))
        e('v_lshlrev_b32 v%d, 4, v%d' % (V_S, V_LANE))
        e('v_lshlrev_b32 v%d, 4, v%d' % (V_C, V_G))
        e('v_mul_u32_u24 v%d, 147456, v%d' % (V_Q, V_G))
        e('v_lshl_add_u32 v%d, v%d, 3, v%d' % (V_Q, V_I, V_Q))
        e('v_lshlrev_b32 v%d, 2, v%d' % (V_Z, V_I))
        if do_cons:
            e('v_mul_u32_u24 v%d, 9216, v%d' % (V_OO, V_I))
            e('v_add_u32 v%d, v%d, v%d' % (V_OO, V_OO, V_C))
            e('s_lshl_b32 s%d, s%d, 6' % (S_T0, S_W))
            e('v_add_u32 v%d, s%d, v%d' % (V_OO, S_T0, V_OO))
            e('v_bfe_u32 v1, v%d, 1, 3' % V_I)
            e('v_xor_b32 v1, v1, v%d' % V_G)
            e('v_lshlrev_b32 v1, 4, v1')
            e('v_mul_u32_u24 v2, 1152, v%d' % V_I)
            e('v_add_u32 v1, v1, v2')
            e('s_and_b32 s%d, s%d, 1' % (S_T0, S_W))
            e('s_mul_i32 s%d, s%d, 36864' % (S_T0, S_T0))
            e('s_sub_u32 s%d, 36864, s%d' % (S_T1, S_T0))
            e('v_add_u32 v%d, s%d, v1' % (V_XB + 0, S_T0))
            e('v_add_u32 v%d, s%d, v1' % (V_XB + 2, S_T1))
            e('v_xor_b32 v%d, 64, v%d' % (V_XB + 1, V_XB + 0))
            e('v_xor_b32 v%d, 64, v%d' % (V_XB + 3, V_XB + 2))
            for b in range(9):
                e('v_add_u32 v1, %d, v%d' % (64 * b, V_LANE))
                e('v_mul_u32_u24 v2, 911, v1')
                e('v_lshrrev_b32 v2, 16, v2')
                e('v_mul_u32_u24 v3, 72, v2')
                e('v_sub_u32 v1, v1, v3')
                e('v_lshrrev_b32 v3, 1, v2')
                e('v_xor_b32 v1, v1, v3')
                e('v_mul_u32_u24 v2, 1152, v2')
                e('v_lshl_add_u32 v%d, v1, 4, v2' % (100 + b))
                e('v_xor_b32 v%d, 64, v%d' % (109 + b, 100 + b))
        e('s_mul_i32 s%d, s%d, 18' % (S_T0, S_CB))
        if do_cons:
            e('s_add_u32 s%d, s%d, s%d' % (S_T1, S_T0, S_W))
            e('s_mul_i32 s%d, s%d, 12288' % (S_WB, S_T1))
            e('s_add_u32 s%d, s%d, %d' % (S_WB, S_WB, WS_DATA))
            e('s_lshr_b32 s%d, s%d, 1' % (S_T2, S_W))
            e('s_add_u32 s%d, s%d, s%d' % (S_T1, S_T0, S_T2))
            e('s_add_u32 s%d, s%d, 16' % (S_T1, S_T1))
            e('s_mul_i32 s%d, s%d, 12288' % (S_WH, S_T1))
            e('s_add_u32 s%d, s%d, %d' % (S_WH, S_WH, WS_DATA))
            e('s_mul_i32 s%d, s%d, 1152' % (S_T1, S_CB))
            e('s_lshl_b32 s%d, s%d, 6' % (S_T3, S_W))
            e('s_add_u32 s%d, s%d, s%d' % (S_SCB, S_T1, S_T3))
            e('s_lshl_b32 s%d, s%d, 6' % (S_T3, S_T2))
            e('s_add_u32 s%d, s%d, s%d' % (S_SCH, S_T1, S_T3))
            e('s_add_u32 s%d, s%d, 1024' % (S_SCH, S_SCH))
            e('s_mul_i32 s%d, s%d, %d' % (S_T3, S_RB, 64 * 9216))
            e('s_add_u32 s%d, s%d, s%d' % (S_T1, S_T1, S_T3))
            e('s_and_b32 s%d, s%d, 1' % (S_T3, S_W))
            e('s_mul_i32 s%d, s%d, %d' % (S_T3, S_T3, 2 * 147456))
            e('s_add_u32 s%d, s%d, s%d' % (S_O + 0, S_T1, S_T3))
            e('s_add_u32 s%d, s%d, 147456' % (S_O + 1, S_O + 0))
            e('s_sub_u32 s%d, %d, s%d' % (S_T3, 2 * 147456, S_T3))
            e('s_add_u32 s%d, s%d, s%d' % (S_O + 2, S_T1, S_T3))
            e('s_add_u32 s%d, s%d, 147456' % (S_O + 3, S_O + 2))
            e('s_lshl_b32 s%d, s%d, 6' % (S_T2, S_T2))
            e('s_add_u32 s%d, s%d, 1024' % (S_T2, S_T2))
            e('s_lshl_b32 s%d, s%d, 6' % (S_T3, S_W))
            e('s_sub_u32 s%d, s%d, s%d' % (S_T2, S_T2, S_T3))
            e('s_add_u32 s%d, s%d, s%d' % (S_OH + 0, S_O + 0, S_T2))
            e('s_add_u32 s%d, s%d, s%d' % (S_OH + 1, S_O + 1, S_T2))
            e('s_mov_b32 s%d, 2.0' % S_SCL)
        if do_prod:
            e('s_mov_b32 s%d, 0' % S_HAS)
            e('s_cmp_ge_u32 s%d, 27' % S_RB)
            e('s_cbranch_scc1 %s_notask' % name)
            e('s_mov_b32 s%d, 1' % S_HAS)
            e('s_cmp_ge_u32 s%d, 24' % S_RB)
            e('s_cbranch_scc1 %s_lasttask' % name)
            e('s_mul_i32 s%d, s%d, 43' % (S_T1, S_RB))
            e('s_lshr_b32 s%d, s%d, 8' % (S_T1, S_T1))
            e('s_mul_i32 s%d, s%d, 6' % (S_T2, S_T1))
            e('s_sub_u32 s%d, s%d, s%d' % (S_UU, S_RB, S_T2))
            e('s_lshl_b32 s%d, s%d, 2' % (S_P, S_T1))
            e('s_add_u32 s%d, s%d, s%d' % (S_P, S_P, S_W))
            e('s_branch %s_taskok' % name)
            e('%s_lasttask:' % name)
            e('s_sub_u32 s%d, s%d, 24' % (S_T1, S_RB))
            e('s_lshl_b32 s%d, s%d, 1' % (S_T1, S_T1))
            e('s_lshr_b32 s%d, s%d, 1' % (S_T2, S_W))
            e('s_add_u32 s%d, s%d, s%d' % (S_UU, S_T1, S_T2))
            e('s_and_b32 s%d, s%d, 1' % (S_P, S_W))
            e('s_add_u32 s%d, s%d, 16' % (S_P, S_P))
            e('%s_taskok:' % name)
            e('s_mul_i32 s%d, s%d, 576' % (S_T1, S_CB))
            e('s_lshl_b32 s%d, s%d, 5' % (S_T2, S_P))
            e('s_add_u32 s%d, s%d, s%d' % (S_T1, S_T1, S_T2))
            e('s_lshl_b32 s%d, s%d, 1' % (S_ZS, S_T1))
            e('s_lshl_b32 s%d, s%d, 2' % (S_T1, S_T1))
            e('s_mul_i32 s%d, s%d, %d' % (S_U, S_UU, 96 * 18432))
            e('s_add_u32 s%d, s%d, s%d' % (S_U, S_U, S_T1))
            e('s_add_u32 s%d, s%d, s%d' % (S_T1, S_T0, S_P))
            e('s_mul_i32 s%d, s%d, 12' % (S_T1, S_T1))
            e('s_lshl_b32 s%d, s%d, 1' % (S_T2, S_UU))
            e('s_add_u32 s%d, s%d, s%d' % (S_T1, S_T1, S_T2))
            e('s_lshl_b32 s%d, s%d, 10' % (S_US, S_T1))
            e('s_add_u32 s%d, s%d, %d' % (S_US, S_US, WS_DATA))
            e('%s_notask:' % name)
        e('s_lshl_b32 s%d, s%d, 8' % (S_NOFF, S_CB))
        e('s_waitcnt lgkmcnt(0)')
        self.stamp(1)
        if a.mode == 'H2':
            e('s_load_dword s%d, s[16:17], s%d' % (S_N, S_NOFF))
        self.srd(S_QW, 6, QW_BYTES)
        self.srd(S_ZP, 10, SC_BYTES)
        self.srd(S_WS, 16, WS_BYTES)
        self.srd(S_X, 4, X_BYTES)
        self.srd(S_SC, 8, SC_BYTES)
        self.srd(S_OUT, 12, OUT_BYTES)

    def unit_loads(self, name):
        a, e = self.a, self.e
        nt = ' nt' if a.qnt else ''
        self.vmem('buffer_load_dword v84, v%d, s[%d:%d], s%d offen' % (V_Z, S_ZP, S_ZP + 3, S_ZS), 'z')
        first = True
        for ks in range(3):
            for el in range(8):
                r = 36 + 2 * (8 * ks + el)
                if not first:
                    step = 18432 if el else 18432 * (32 - 7)
                    e('s_add_u32 s%d, s%d, %d' % (S_U, S_U, step))
                first = False
                self.vmem('buffer_load_dwordx2 v[%d:%d], v%d, s[%d:%d], s%d offen%s' % (r, r + 1, V_Q, S_QW, S_QW + 3, S_U, nt), 'unit')

    def x_dma(self):
        a, e = self.a, self.e
        nt = ' nt' if a.xnt else ''
        e('s_lshl_b32 s%d, s%d, 6' % (S_T0, S_RB))
        e('s_lshl_b32 s%d, s%d, 4' % (S_T1, S_W))
        e('s_add_u32 s%d, s%d, s%d' % (S_T0, S_T0, S_T1))
        e('s_mul_i32 s%d, s%d, 1152' % (S_T0, S_T0))
        e('s_mul_i32 s%d, s%d, %d' % (S_T1, S_W, 18 * 1024))
        for a2 in range(2):
            if a2:
                e('s_add_u32 s%d, s%d, %d' % (S_T0, S_T0, 8 * 1152))
            for b in range(9):
                e('s_add_u32 m0, s%d, %d' % (S_T1, (9 * a2 + b) * 1024))
                e('s_nop 0')
                self.vmem('buffer_load_dwordx4 v%d, s[%d:%d], s%d offen lds%s' % ((109 if a2 else 100) + b, S_X, S_X + 3, S_T0, nt), 'xdma')

    def pack_publish(self, name):
        a, e = self.a, self.e
        Z0, Z1, ZI0, ZI1, T0, T1, LO, HI, ACC, TM = 85, 86, 87, 88, 89, 90, 91, 92, 93, 94
        e(self.wait_vm('z'))
        e('v_lshlrev_b32 v%d, 16, v84' % Z0)
        e('v_and_b32 v%d, 0xffff0000, v84' % Z1)
        e('v_cvt_u32_f32 v%d, v%d' % (ZI0, Z0))
        e('v_cvt_u32_f32 v%d, v%d' % (ZI1, Z1))
        e('v_cvt_f32_u32 v%d, v%d' % (LO, ZI0))
        e('v_cvt_f32_u32 v%d, v%d' % (HI, ZI1))
        e('v_or_b32 v%d, v%d, v%d' % (ACC, ZI0, ZI1))
        e('v_cmp_neq_f32 s[%d:%d], v%d, v%d' % (S_T2, S_T3, LO, Z0))
        e('v_cmp_neq_f32 vcc, v%d, v%d' % (HI, Z1))
        e('v_sub_u32 v%d, 3, v%d' % (ZI0, ZI0))
        e('v_sub_u32 v%d, 3, v%d' % (ZI1, ZI1))
        e('s_or_b64 s[%d:%d], s[%d:%d], vcc' % (S_T2, S_T3, S_T2, S_T3))
        e('v_mov_b32 v%d, 0x00090a0b' % TM)
        e('s_mov_b32 s%d, 0x00030201' % S_T0)
        e('v_alignbyte_b32 v%d, s%d, v%d, v%d' % (T0, S_T0, TM, ZI0))
        e('v_alignbyte_b32 v%d, s%d, v%d, v%d' % (T1, S_T0, TM, ZI1))
        q = lambda ks, el, t: 36 + 2 * (8 * ks + el) + t
        for ks in range(3):
            n = self.vm.index('unit')
            need = n + 8 * (ks + 1) - 1
            e('s_waitcnt vmcnt(%d)' % (len(self.vm) - 1 - need))
            for el in range(0, 8):
                e('v_or3_b32 v%d, v%d, v%d, v%d' % (ACC, ACC, q(ks, el, 0), q(ks, el, 1)))
            for t in range(2):
                T = T0 if t == 0 else T1
                e('v_lshl_or_b32 v%d, v%d, 8, v%d' % (LO, q(ks, 6, t), q(ks, 4, t)))
                e('v_lshl_or_b32 v%d, v%d, 8, v%d' % (HI, q(ks, 7, t), q(ks, 5, t)))
                e('v_lshl_or_b32 v%d, v%d, 8, v%d' % (LO, LO, q(ks, 2, t)))
                e('v_lshl_or_b32 v%d, v%d, 8, v%d' % (HI, HI, q(ks, 3, t)))
                e('v_lshl_or_b32 v%d, v%d, 8, v%d' % (LO, LO, q(ks, 0, t)))
                e('v_lshl_or_b32 v%d, v%d, 8, v%d' % (HI, HI, q(ks, 1, t)))
                e('v_perm_b32 v%d, v%d, v%d, v%d' % (LO, T, T, LO))
                e('v_perm_b32 v%d, v%d, v%d, v%d' % (HI, T, T, HI))
                e('v_lshl_or_b32 v%d, v%d, 4, v%d' % (120 + 4 * t + ks, HI, LO))
        e('v_and_b32 v%d, 0xfffffffc, v%d' % (ACC, ACC))
        e('v_cmp_ne_u32 vcc, 0, v%d' % ACC)
        if a.mode == 'H2':
            e('s_waitcnt lgkmcnt(0)')
            e('s_xor_b32 s%d, s%d, 1' % (S_TAG, S_N))
        else:
            e('s_mov_b32 s%d, 0x5a5a5a5b' % S_TAG)
        e('s_or_b64 s[%d:%d], s[%d:%d], vcc' % (S_T2, S_T3, S_T2, S_T3))
        e('v_mov_b32 v123, s%d' % S_TAG)
        e('v_mov_b32 v127, s%d' % S_TAG)
        if a.mode == 'H2':
            e('s_cmp_lg_u64 s[%d:%d], 0' % (S_T2, S_T3))
            e('s_cbranch_scc1 %s_nopub' % name)
        st = ' sc1' if a.mode == 'H2' else ''
        self.vmem('buffer_store_dwordx4 v[120:123], v%d, s[%d:%d], s%d offen%s' % (V_S, S_WS, S_WS + 3, S_US, st), 'pub')
        self.vmem('buffer_store_dwordx4 v[124:127], v%d, s[%d:%d], s%d offen offset:1024%s' % (V_S, S_WS, S_WS + 3, S_US, st), 'pub')

    def xreg(self, s, sg):
        i = s * 4 + sg
        if s < 16:
            return 'a[%d:%d]' % (4 * i, 4 * i + 3)
        r = V_XX + 4 * (i - 64)
        return 'v[%d:%d]' % (r, r + 3)

    def x_reads(self):
        for s in range(18):
            for sg in range(4):
                base = V_XB + 2 * (sg >> 1) + (s & 1)
                off = (sg & 1) * 18432 + (s >> 1) * 128
                self.e('ds_read_b128 %s, v%d offset:%d' % (self.xreg(s, sg), base, off))

    def stage_params(self, kind, st):
        if kind == 'full':
            return dict(wadd=st * 4 * 12288, wb=S_WB, scb=S_SCB, scadd=256 * st, so=[S_O + i for i in range(4)], oimm=256 * st, nsig=4)
        return dict(wadd=0, wb=S_WH, scb=S_SCH, scadd=0, so=[S_OH, S_OH + 1], oimm=0, nsig=2)

    def slot_load_instrs(self, P, buf):
        L = []
        flags = ' sc1' if self.a.mode == 'H2' else ''
        for j in range(12):
            if j % 4 == 0:
                L.append(('s_add_u32 s%d, s%d, %d' % (S_L0 + j // 4, P['wb'], P['wadd'] + 4096 * (j // 4)), None))
        for j in range(12):
            r = V_SB[buf] + 4 * j
            off = (j % 4) * 1024
            L.append(('buffer_load_dwordx4 v[%d:%d], v%d, s[%d:%d], s%d offen%s%s' % (
                r, r + 3, V_S, S_WS, S_WS + 3, S_L0 + j // 4, (' offset:%d' % off) if off else '', flags), 'slot'))
        return L

    def xad_instrs(self, buf):
        L = []
        for j in range(12):
            r = V_SB[buf] + 4 * j + 3
            L.append('v_xad_u32 v%d, v%d, s%d, %s' % (V_BAD, r, S_TAG, '0' if j == 0 else 'v%d' % V_BAD))
        return L

    def acquire_loop(self, name, P, buf, lbl, back):
        e = self.e
        e('s_mov_b32 s%d, 0' % S_CNT)
        e('%s:' % lbl)
        for ins, tag in self.slot_load_instrs(P, buf):
            e(ins)
        e('s_waitcnt vmcnt(0)')
        for ins in self.xad_instrs(buf):
            e(ins)
        e('v_cmp_ne_u32 vcc, 0, v%d' % V_BAD)
        e('s_cbranch_vccz %s' % back)
        e('s_add_u32 s%d, s%d, 1' % (S_CNT, S_CNT))
        e('s_cmp_lt_u32 s%d, %d' % (S_CNT, self.a.limit))
        e('s_cbranch_scc1 %s' % lbl)
        e('s_branch %s_fallback' % name)

    def cvt_instrs(self, buf, s, fb):
        u, ks = s // 3, s % 3
        L = []
        for t in range(2):
            src = V_SB[buf] + 4 * (2 * u + t) + ks
            for j in range(4):
                L.append('v_cvt_scalef32_pk_bf16_fp4 v%d, v%d, s%d op_sel:[%d,%d,0]' % (V_F[fb] + 4 * t + j, src, S_SCL, j & 1, j >> 1))
        return L

    def unpack_instrs(self):
        L = []
        for r in range(4):
            L.append('v_lshlrev_b32 v%d, 16, v%d' % (V_SU + r, V_SR + r))
            L.append('v_and_b32 v%d, 0xffff0000, v%d' % (V_SU + 4 + r, V_SR + r))
        return L

    def epi_instrs(self, P, acset):
        out = []
        for sg in range(P['nsig']):
            L = []
            a0 = V_AC[acset] + 4 * sg
            a1 = V_AC[acset] + 16 + 4 * sg
            o = V_O[sg & 1]
            for r in range(4):
                L.append(('v_mul_f32 v%d, v%d, v%d' % (a0 + r, a0 + r, V_SU + r), None))
                L.append(('v_mul_f32 v%d, v%d, v%d' % (a1 + r, a1 + r, V_SU + 4 + r), None))
            for r in range(4):
                L.append(('v_cvt_pk_bf16_f32 v%d, v%d, v%d' % (o + r, a0 + r, a1 + r), None))
            imm = (' offset:%d' % P['oimm']) if P['oimm'] else ''
            L.append(('buffer_store_dwordx4 v[%d:%d], v%d, s[%d:%d], s%d offen%s%s' % (
                o, o + 3, V_OO, S_OUT, S_OUT + 3, P['so'][sg], imm, self.a.oflags), 'out'))
            out.append(L)
        return out

    def scale_load(self, P):
        L = []
        L.append(('s_add_u32 s%d, s%d, %d' % (S_T0, P['scb'], P['scadd']), None))
        L.append(('buffer_load_dwordx4 v[%d:%d], v%d, s[%d:%d], s%d offen' % (V_SR, V_SR + 3, V_C, S_SC, S_SC + 3, S_T0), 'scale'))
        return L

    def mfmas(self, P, acset, s, fb, last=False):
        L = []
        order = [(t, sg) for t in range(2) for sg in range(P['nsig'])]
        if self.a.morder == 'sig' or (last and self.a.lastsig):
            order = [(t, sg) for sg in range(P['nsig']) for t in range(2)]
        for t, sg in order:
            ac = V_AC[acset] + 16 * t + 4 * sg
            f = V_F[fb] + 4 * t
            c = '0' if s == 0 else 'v[%d:%d]' % (ac, ac + 3)
            L.append('v_mfma_f32_16x16x32_bf16 v[%d:%d], v[%d:%d], %s, %s' % (ac, ac + 3, f, f + 3, self.xreg(s, sg), c))
        return L

    def stage(self, name, n, stages):
        a = self.a
        kind, st = stages[n]
        P = self.stage_params(kind, st)
        prevP = self.stage_params(*stages[n - 1]) if n > 0 else None
        nextP = self.stage_params(*stages[n + 1]) if n + 1 < len(stages) else None
        buf, acs = n & 1, n & 1
        Q = [[] for _ in range(18)]
        if nextP:
            ld = self.slot_load_instrs(nextP, buf ^ 1)
            sal, lds = ld[:3], ld[3:]
            Q[0] += sal
            for j, x in enumerate(lds):
                Q[j // 3].append(x)
        if prevP:
            Q[0] += [(x, None) for x in self.unpack_instrs()]
        Q[4] += self.scale_load(P)
        if prevP:
            ep = self.epi_instrs(prevP, acs ^ 1)
            ns = len(ep)
            flat = []
            for L in ep:
                flat += L
            k0, k1 = 1, 13
            per = -(-len(flat) // (k1 - k0))
            pos = 0
            k = k0
            cnt = 0
            for x in flat:
                if x[1] == 'out' and k < 5:
                    k = 5
                    cnt = 0
                Q[k].append(x)
                cnt += 1
                if cnt >= per and k < k1:
                    k += 1
                    cnt = 0
        if nextP and a.mode == 'H2':
            Q[14].append(('WAIT', 'slot+scale'))
            xa = self.xad_instrs(buf ^ 1)
            Q[14] += [(x, None) for x in xa[:5]]
            Q[15] += [(x, None) for x in xa[5:]]
            Q[16].append(('v_cmp_ne_u32 vcc, 0, v%d' % V_BAD, None))
            Q[16].append(('BRANCH', n + 1))
        elif nextP:
            Q[14].append(('WAIT', 'slot+scale'))
        else:
            Q[14].append(('WAIT', 'scale'))
            Q[15] += [(x, None) for x in self.unpack_instrs()]
        for s in range(18):
            fb = s & 1
            M = self.mfmas(P, acs, s, fb, last=(s == 17 and not nextP))
            if s < 17:
                C = self.cvt_instrs(buf, s + 1, fb ^ 1)
            elif nextP:
                C = self.cvt_instrs(buf ^ 1, 0, fb ^ 1)
            else:
                C = []
            ng = len(M)
            cper = -(-len(C) // ng) if C else 0
            others = list(Q[s])
            for g, m in enumerate(M):
                self.e(m)
                fill = []
                fill += [(c, None) for c in C[g * cper:(g + 1) * cper]]
                take = -(-len(others) // (ng - g))
                fill += others[:take]
                others = others[take:]
                for ins, tag in fill:
                    if ins == 'WAIT':
                        if tag == 'slot+scale':
                            self.e(self.wait_vm('scale'))
                        else:
                            self.e(self.wait_vm(tag))
                    elif ins == 'BRANCH':
                        self.e('s_cbranch_vccnz %s_retry%d' % (name, tag))
                        self.e('%s_back%d:' % (name, tag))
                        self.retry.append((tag, nextP, buf ^ 1))
                    elif tag:
                        self.vmem(ins, tag)
                    else:
                        self.e(ins)
            assert not others
        return P

    def final_epilogue(self, name, P, acs):
        e = self.e
        e('s_nop 7')
        for L in self.epi_instrs(P, acs):
            for ins, tag in L:
                if tag:
                    self.vmem(ins, tag)
                else:
                    e(ins)

    def nonce_bump(self):
        e = self.e
        if self.a.mode != 'H2':
            return
        e('s_cmp_lg_u32 s%d, 0' % S_W)
        e('s_cbranch_scc1 NB_%d' % id(self))
        e('v_mov_b32 v1, s%d' % S_NOFF)
        e('v_mov_b32 v2, 2')
        e('s_mov_b64 s[%d:%d], exec' % (S_T2, S_T3))
        e('s_mov_b64 exec, 1')
        e('buffer_atomic_add v2, v1, s[%d:%d], 0 offen sc1' % (S_WS, S_WS + 3))
        e('s_mov_b64 exec, s[%d:%d]' % (S_T2, S_T3))
        e('NB_%d:' % id(self))

    def fallback(self, name):
        e = self.e
        e('%s_fallback:' % name)
        e('s_waitcnt vmcnt(0) lgkmcnt(0)')
        S_J, S_K, S_COL = S_L0, S_L0 + 1, S_L0 + 2
        A = V_AC[0]
        QV = 36
        FA = 52
        XF = 60
        ZS = 76
        TM = 80
        e('s_mov_b32 s%d, 0' % S_J)
        e('%s_fb_job:' % name)
        e('s_lshl_b32 s%d, s%d, 2' % (S_T0, S_J))
        e('s_add_u32 s%d, s%d, s%d' % (S_T0, S_T0, S_W))
        e('s_lshr_b32 s%d, s%d, 1' % (S_T1, S_W))
        e('s_add_u32 s%d, s%d, 16' % (S_T1, S_T1))
        e('s_cmp_lt_u32 s%d, 4' % S_J)
        e('s_cselect_b32 s%d, s%d, s%d' % (S_P, S_T0, S_T1))
        e('s_mul_i32 s%d, s%d, 576' % (S_COL, S_CB))
        e('s_lshl_b32 s%d, s%d, 5' % (S_T0, S_P))
        e('s_add_u32 s%d, s%d, s%d' % (S_COL, S_COL, S_T0))
        e('s_lshl_b32 s%d, s%d, 1' % (S_T0, S_COL))
        e('buffer_load_dword v%d, v%d, s[%d:%d], s%d offen' % (TM, V_Z, S_ZP, S_ZP + 3, S_T0))
        e('buffer_load_dword v%d, v%d, s[%d:%d], s%d offen' % (TM + 1, V_Z, S_SC, S_SC + 3, S_T0))
        for r in range(32):
            e('v_mov_b32 v%d, 0' % (A + r))
        e('s_waitcnt vmcnt(0)')
        e('v_lshlrev_b32 v%d, 16, v%d' % (ZS, TM))
        e('v_and_b32 v%d, 0xffff0000, v%d' % (ZS + 1, TM))
        e('v_lshlrev_b32 v%d, 16, v%d' % (ZS + 2, TM + 1))
        e('v_and_b32 v%d, 0xffff0000, v%d' % (ZS + 3, TM + 1))
        e('s_lshl_b32 s%d, s%d, 2' % (S_U, S_COL))
        e('s_mov_b32 s%d, 0' % S_K)
        e('%s_fb_k:' % name)
        for el in range(8):
            e('buffer_load_dwordx2 v[%d:%d], v%d, s[%d:%d], s%d offen' % (QV + 2 * el, QV + 2 * el + 1, V_Q, S_QW, S_QW + 3, S_U))
            e('s_add_u32 s%d, s%d, %d' % (S_U, S_U, 18432 if el < 7 else 18432 * 25))
        e('s_lshr_b32 s%d, s%d, 1' % (S_T0, S_K))
        e('s_lshl_b32 s%d, s%d, 7' % (S_T0, S_T0))
        e('s_and_b32 s%d, s%d, 1' % (S_T1, S_K))
        e('s_lshl_b32 s%d, s%d, 6' % (S_T1, S_T1))
        e('v_add_u32 v%d, s%d, v%d' % (TM, S_T0, V_XB))
        e('v_add_u32 v%d, s%d, v%d' % (TM + 1, S_T0, V_XB + 2))
        e('v_xor_b32 v%d, s%d, v%d' % (TM, S_T1, TM))
        e('v_xor_b32 v%d, s%d, v%d' % (TM + 1, S_T1, TM + 1))
        for sg in range(4):
            e('ds_read_b128 v[%d:%d], v%d offset:%d' % (XF + 4 * sg, XF + 4 * sg + 3, TM + (sg >> 1), (sg & 1) * 18432))
        e('s_waitcnt vmcnt(0)')
        for t in range(2):
            for h in range(4):
                qa, qb = QV + 2 * (2 * h) + t, QV + 2 * (2 * h + 1) + t
                x0, x1 = TM + 2, TM + 3
                e('v_cvt_f32_i32 v%d, v%d' % (x0, qa))
                e('v_cvt_f32_i32 v%d, v%d' % (x1, qb))
                e('v_cvt_pk_bf16_f32 v%d, v%d, v%d' % (x1, x0, x1))
                e('v_lshlrev_b32 v%d, 16, v%d' % (x0, x1))
                e('v_and_b32 v%d, 0xffff0000, v%d' % (x1, x1))
                e('v_sub_f32 v%d, v%d, v%d' % (x0, x0, ZS + t))
                e('v_sub_f32 v%d, v%d, v%d' % (x1, x1, ZS + t))
                e('v_cvt_pk_bf16_f32 v%d, v%d, v%d' % (x1, x0, x1))
                e('v_lshlrev_b32 v%d, 16, v%d' % (x0, x1))
                e('v_and_b32 v%d, 0xffff0000, v%d' % (x1, x1))
                e('v_mul_f32 v%d, v%d, v%d' % (x0, x0, ZS + 2 + t))
                e('v_mul_f32 v%d, v%d, v%d' % (x1, x1, ZS + 2 + t))
                e('v_cvt_pk_bf16_f32 v%d, v%d, v%d' % (FA + 4 * t + h, x0, x1))
        e('s_waitcnt lgkmcnt(0)')
        e('s_nop 1')
        for t in range(2):
            for sg in range(4):
                ac = A + 16 * t + 4 * sg
                e('v_mfma_f32_16x16x32_bf16 v[%d:%d], v[%d:%d], v[%d:%d], v[%d:%d]' % (
                    ac, ac + 3, FA + 4 * t, FA + 4 * t + 3, XF + 4 * sg, XF + 4 * sg + 3, ac, ac + 3))
        e('s_add_u32 s%d, s%d, 1' % (S_K, S_K))
        e('s_cmp_lt_u32 s%d, 18' % S_K)
        e('s_cbranch_scc1 %s_fb_k' % name)
        e('s_nop 7')
        e('s_nop 1')
        e('s_lshl_b32 s%d, s%d, 8' % (S_T0, S_J))
        e('s_cmp_lt_u32 s%d, 4' % S_J)
        e('s_cbranch_scc0 %s_fb_half' % name)
        for sg in range(4):
            o = V_O[sg & 1]
            for r in range(4):
                e('v_cvt_pk_bf16_f32 v%d, v%d, v%d' % (o + r, A + 4 * sg + r, A + 16 + 4 * sg + r))
            e('s_add_u32 s%d, s%d, s%d' % (S_T1, S_O + sg, S_T0))
            e('buffer_store_dwordx4 v[%d:%d], v%d, s[%d:%d], s%d offen' % (o, o + 3, V_OO, S_OUT, S_OUT + 3, S_T1))
        e('s_waitcnt vmcnt(0)')
        e('s_add_u32 s%d, s%d, 1' % (S_J, S_J))
        e('s_branch %s_fb_job' % name)
        e('%s_fb_half:' % name)
        for sg in range(2):
            o = V_O[sg & 1]
            for r in range(4):
                e('v_cvt_pk_bf16_f32 v%d, v%d, v%d' % (o + r, A + 4 * sg + r, A + 16 + 4 * sg + r))
            e('buffer_store_dwordx4 v[%d:%d], v%d, s[%d:%d], s%d offen' % (o, o + 3, V_OO, S_OUT, S_OUT + 3, S_OH + sg))
        self.nonce_bump_lbl(name + '_fb')
        e('s_endpgm')

    def nonce_bump_lbl(self, lbl):
        e = self.e
        if self.a.mode != 'H2':
            return
        e('s_cmp_lg_u32 s%d, 0' % S_W)
        e('s_cbranch_scc1 %s_nb' % lbl)
        e('v_mov_b32 v1, s%d' % S_NOFF)
        e('v_mov_b32 v2, 2')
        e('s_mov_b64 exec, 1')
        e('buffer_atomic_add v2, v1, s[%d:%d], 0 offen sc1' % (S_WS, S_WS + 3))
        e('s_mov_b64 exec, -1')
        e('%s_nb:' % lbl)

    def write_stamps(self, name):
        if not self.a.stamps:
            return
        e = self.e
        e('s_waitcnt lgkmcnt(0)')
        for k in range(8):
            e('v_mov_b32 v%d, s%d' % (36 + k, S_STAMP + 2 * k))
        e('s_lshl_b32 s%d, s2, 2' % S_T0)
        e('s_add_u32 s%d, s%d, s%d' % (S_T0, S_T0, S_W))
        e('s_lshl_b32 s%d, s%d, 5' % (S_T0, S_T0))
        e('s_add_u32 s%d, s%d, %d' % (S_T0, S_T0, WS_STAMP))
        e('v_mov_b32 v1, 0')
        e('s_mov_b64 exec, 1')
        e('buffer_store_dwordx4 v[36:39], v1, s[%d:%d], s%d offen' % (S_WS, S_WS + 3, S_T0))
        e('buffer_store_dwordx4 v[40:43], v1, s[%d:%d], s%d offen offset:16' % (S_WS, S_WS + 3, S_T0))
        e('s_mov_b64 exec, -1')

    def kernel(self, name, do_prod, do_cons):
        a, e = self.a, self.e
        self.vm = []
        self.retry = []
        e('.text')
        e('.globl %s' % name)
        e('.p2align 8')
        e('.type %s,@function' % name)
        e('%s:' % name)
        n = name.replace('standalone__weight_only_int_quip_2__prompt_kernel', 'K')
        self.prologue(n, do_prod, do_cons)
        if do_prod:
            e('s_cmp_eq_u32 s%d, 0' % S_HAS)
            e('s_cbranch_scc1 %s_nounit' % n)
            base = list(self.vm)
            self.unit_loads(n)
            if do_cons:
                self.x_dma()
            self.pack_publish(n)
            self.stamp(2)
            if do_cons:
                e(self.wait_vm('xdma'))
                e('s_branch %s_xready' % n)
                e('%s_nopub:' % n)
                e('s_waitcnt vmcnt(0)')
                e('s_branch %s_xready' % n)
                e('%s_nounit:' % n)
                self.x_dma()
                if a.mode == 'H2':
                    e('s_waitcnt lgkmcnt(0)')
                    e('s_xor_b32 s%d, s%d, 1' % (S_TAG, S_N))
                self.stamp(2)
                e('s_waitcnt vmcnt(0)')
                e('%s_xready:' % n)
            else:
                e('%s_nopub:' % n)
                e('%s_nounit:' % n)
        elif do_cons:
            self.x_dma()
            e('s_waitcnt vmcnt(0)')
        if do_cons:
            self.vm = []
            e('s_barrier')
            self.stamp(3)
            self.x_reads()
            stages = [('full', i) for i in range(4)]
            stages = ([('half', 0)] + stages) if a.halffirst else (stages + [('half', 0)])
            P0 = self.stage_params(*stages[0])
            if a.mode == 'H2':
                e('s_mov_b32 s%d, 0' % S_CNT)
                e('s_add_u32 s%d, s%d, %d' % (S_L0 + 2, P0['wb'], P0['wadd'] + 8192))
                e('%s_poll:' % n)
                r = V_SB[0] + 44
                e('buffer_load_dwordx4 v[%d:%d], v%d, s[%d:%d], s%d offen offset:3072 sc1' % (r, r + 3, V_S, S_WS, S_WS + 3, S_L0 + 2))
                e('s_waitcnt vmcnt(0)')
                e('v_cmp_ne_u32 vcc, s%d, v%d' % (S_TAG, r + 3))
                e('s_cbranch_vccz %s_polled' % n)
                e('s_add_u32 s%d, s%d, 1' % (S_CNT, S_CNT))
                e('s_cmp_lt_u32 s%d, %d' % (S_CNT, a.limit))
                e('s_cbranch_scc1 %s_poll' % n)
                e('s_branch %s_fallback' % n)
                e('%s_polled:' % n)
                self.stamp(4)
                self.acquire_loop(n, P0, 0, '%s_acq0' % n, '%s_back0' % n)
                e('%s_back0:' % n)
            else:
                for ins, tag in self.slot_load_instrs(P0, 0):
                    e(ins)
                e('s_waitcnt vmcnt(0)')
            self.stamp(5)
            e('s_waitcnt lgkmcnt(0)')
            for c in self.cvt_instrs(0, 0, 0):
                e(c)
            e('s_nop 1')
            self.vm = []
            for i in range(len(stages)):
                if i == len(stages) - 1:
                    pass
                P = self.stage(n, i, stages)
            self.stamp(6)
            self.nonce_bump_lbl(n + '_end')
            self.final_epilogue(n, P, (len(stages) - 1) & 1)
            if a.stamps:
                e('s_waitcnt vmcnt(0)')
                self.stamp(7)
        self.write_stamps(n)
        e('%s_done:' % n)
        e('s_endpgm')
        if do_cons:
            for tag, P, buf in self.retry:
                self.acquire_loop(n, P, buf, '%s_retry%d' % (n, tag), '%s_back%d' % (n, tag))
            self.fallback(n)
        e('%s_end:' % n)
        e('s_nop 0')
        e('.section .rodata,"a"')
        e('.p2align 6')
        e('.amdhsa_kernel %s' % name)
        e('  .amdhsa_next_free_vgpr 512')
        e('  .amdhsa_next_free_sgpr 96')
        e('  .amdhsa_accum_offset 256')
        e('  .amdhsa_group_segment_fixed_size 0')
        e('  .amdhsa_float_denorm_mode_32 3')
        e('  .amdhsa_kernarg_size 56')
        e('  .amdhsa_user_sgpr_count 2')
        e('  .amdhsa_user_sgpr_kernarg_segment_ptr 1')
        e('  .amdhsa_system_sgpr_workgroup_id_x 1')
        e('.end_amdhsa_kernel')

    def build(self):
        a = self.a
        H = []
        H.append('; weight-only int2 GEMM: out = x @ ((qw - zeros) * scales), M=2048 K=576 N=4608 (generated by my own script)')
        if a.mode == 'H2':
            H.append('; @launch grid=(256,1,1) block=(256,1,1) lds=%d' % LDS_BYTES)
        else:
            H.append('; @launch kernel=pack_kernel grid=(256,1,1) block=(256,1,1) lds=0')
            H.append('; @launch kernel=%s grid=(256,1,1) block=(256,1,1) lds=%d' % (KN, LDS_BYTES))
        H.append('.amdgcn_target "amdgcn-amd-amdhsa--gfx950"')
        if a.mode == 'H2':
            self.kernel(KN, True, True)
        else:
            self.kernel('pack_kernel', True, False)
            self.kernel(KN, False, True)
        body = []
        for l in self.L:
            if l.endswith(':') or l.startswith('.'):
                body.append(l)
            else:
                body.append('    ' + l)
        return '\n'.join(H + body) + '\n'


def main():
    ap = argparse.ArgumentParser()
    ap.add_argument('-o', default='h2.s')
    ap.add_argument('--mode', default='H2')
    ap.add_argument('--R', type=int, default=8)
    ap.add_argument('--stamps', action='store_true')
    ap.add_argument('--nopf', dest='pf', action='store_false')
    ap.add_argument('--qnt', type=int, default=1)
    ap.add_argument('--xnt', type=int, default=0)
    ap.add_argument('--oflags', default=' sc1')
    ap.add_argument('--halffirst', type=int, default=1)
    ap.add_argument('--morder', default='t')
    ap.add_argument('--lastsig', type=int, default=0)
    ap.add_argument('--limit', type=int, default=4096)
    a = ap.parse_args()
    if a.oflags and not a.oflags.startswith(' '):
        a.oflags = ' ' + a.oflags
    if a.oflags.strip() == 'none':
        a.oflags = ''
    g = Gen(a)
    open(a.o, 'w').write(g.build())


if __name__ == '__main__':
    main()
```

```python
import sys, argparse

KN = 'standalone__weight_only_int_quip_2__prompt_kernel'
X_BYTES, QW_BYTES, SC_BYTES, OUT_BYTES, WS_BYTES = 2359296, 10616832, 9216, 18874368, 268435456
WS_DATA = 4096
WS_STAMP = 0x200000
LDS_BYTES = 73728

S_X, S_QW, S_SC, S_ZP, S_OUT, S_WS, S_CODE = 20, 24, 28, 32, 36, 40, 44
S_W, S_RB, S_CB, S_T0, S_T1, S_TAG, S_N, S_CNT = 48, 49, 50, 51, 52, 53, 54, 55
S_O = 56
S_OH = 60
S_WB, S_WH = 62, 63
S_L0 = 64
S_SCB, S_SCH = 67, 68
S_U, S_US, S_ZS, S_HAS, S_P, S_UU = 69, 70, 71, 72, 73, 74
S_SCL = 75
S_STAMP = 76
S_T2, S_T3 = 92, 93
S_NOFF = 94
V_XX = 4
V_SB = (36, 84)
V_AC = (132, 164)
V_F = (196, 204)
V_SR = 212
V_SU = 216
V_O = (224, 228)
V_XB = 240
V_S, V_OO, V_C, V_Q, V_Z, V_BAD, V_LANE, V_I, V_G = 244, 245, 246, 247, 248, 249, 250, 251, 252
V_TMP = 232
V_DUMMY = 255


class Gen:
    def __init__(self, a):
        self.a = a
        self.L = []
        self.vm = []
        self.retry = []
        self.nstamp = 0

    def e(self, s):
        self.L.append(s)

    def vmem(self, s, tag):
        self.L.append(s)
        self.vm.append(tag)

    def wait_vm(self, tag):
        idx = max(i for i, t in enumerate(self.vm) if t == tag)
        n = len(self.vm) - 1 - idx
        assert n <= 63
        return 's_waitcnt vmcnt(%d)' % n

    def stamp(self, k):
        if self.a.stamps:
            self.e('s_memrealtime s[%d:%d]' % (S_STAMP + 2 * k, S_STAMP + 2 * k + 1))

    def srd(self, r, p, n):
        self.e('s_mov_b32 s%d, s%d' % (r, p))
        self.e('s_mov_b32 s%d, s%d' % (r + 1, p + 1))
        self.e('s_mov_b32 s%d, %d' % (r + 2, n))
        self.e('s_mov_b32 s%d, 0x00020000' % (r + 3))

    def prologue(self, name, do_prod, do_cons):
        a, e = self.a, self.e
        e('s_cmp_ge_u32 s2, 256')
        e('s_cbranch_scc1 %s_done' % name)
        e('s_getpc_b64 s[%d:%d]' % (S_CODE, S_CODE + 1))
        e('%s_pc:' % name)
        e('s_load_dwordx8 s[4:11], s[0:1], 0')
        e('s_load_dwordx4 s[12:15], s[0:1], 32')
        e('s_load_dwordx2 s[16:17], s[0:1], 48')
        self.stamp(0)
        e('s_mov_b32 s%d, %s_end-%s_pc' % (S_CODE + 2, name, name))
        e('s_mov_b32 s%d, 0x00020000' % (S_CODE + 3))
        e('v_lshlrev_b32 v1, 7, v0')
        if a.pf:
            self.vmem('buffer_load_dword v%d, v1, s[%d:%d], 0 offen' % (V_DUMMY, S_CODE, S_CODE + 3), 'pf')
        e('v_lshrrev_b32 v2, 6, v0')
        e('v_and_b32 v%d, 63, v0' % V_LANE)
        e('v_readfirstlane_b32 s%d, v2' % S_W)
        e('v_and_b32 v%d, 15, v%d' % (V_I, V_LANE))
        e('v_lshrrev_b32 v%d, 4, v%d' % (V_G, V_LANE))
        e('s_and_b32 s%d, s2, 7' % S_T0)
        e('s_lshr_b32 s%d, s2, 3' % S_T1)
        if a.R == 8:
            e('s_and_b32 s%d, s%d, 3' % (S_RB, S_T0))
            e('s_lshl_b32 s%d, s%d, 3' % (S_RB, S_RB))
            e('s_and_b32 s%d, s%d, 7' % (S_T2, S_T1))
            e('s_add_u32 s%d, s%d, s%d' % (S_RB, S_RB, S_T2))
            e('s_lshr_b32 s%d, s%d, 2' % (S_CB, S_T0))
            e('s_lshl_b32 s%d, s%d, 2' % (S_CB, S_CB))
            e('s_lshr_b32 s%d, s%d, 3' % (S_T2, S_T1))
            e('s_add_u32 s%d, s%d, s%d' % (S_CB, S_CB, S_T2))
        elif a.R == 4:
            e('s_lshl_b32 s%d, s%d, 2' % (S_RB, S_T0))
            e('s_and_b32 s%d, s%d, 3' % (S_T2, S_T1))
            e('s_add_u32 s%d, s%d, s%d' % (S_RB, S_RB, S_T2))
            e('s_lshr_b32 s%d, s%d, 2' % (S_CB, S_T1))
        elif a.R == 16:
            e('s_and_b32 s%d, s%d, 1' % (S_RB, S_T0))
            e('s_lshl_b32 s%d, s%d, 4' % (S_RB, S_RB))
            e('s_and_b32 s%d, s%d, 15' % (S_T2, S_T1))
            e('s_add_u32 s%d, s%d, s%d' % (S_RB, S_RB, S_T2))
            e('s_lshr_b32 s%d, s%d, 1' % (S_CB, S_T0))
            e('s_lshl_b32 s%d, s%d, 1' % (S_CB, S_CB))
            e('s_lshr_b32 s%d, s%d, 4' % (S_T2, S_T1))
            e('s_add_u32 s%d, s%d, s%d' % (S_CB, S_CB, S_T2))
        elif a.R == 32:
            e('s_mov_b32 s%d, s%d' % (S_RB, S_T1))
            e('s_mov_b32 s%d, s%d' % (S_CB, S_T0))
        e('v_lshlrev_b32 v%d, 4, v%d' % (V_S, V_LANE))
        e('v_lshlrev_b32 v%d, 4, v%d' % (V_C, V_G))
        e('v_mul_u32_u24 v%d, 147456, v%d' % (V_Q, V_G))
        e('v_lshl_add_u32 v%d, v%d, 3, v%d' % (V_Q, V_I, V_Q))
        e('v_lshlrev_b32 v%d, 2, v%d' % (V_Z, V_I))
        if do_cons:
            e('v_mul_u32_u24 v%d, 9216, v%d' % (V_OO, V_I))
            e('v_add_u32 v%d, v%d, v%d' % (V_OO, V_OO, V_C))
            e('s_lshl_b32 s%d, s%d, 6' % (S_T0, S_W))
            e('v_add_u32 v%d, s%d, v%d' % (V_OO, S_T0, V_OO))
            e('v_bfe_u32 v1, v%d, 1, 3' % V_I)
            e('v_xor_b32 v1, v1, v%d' % V_G)
            e('v_lshlrev_b32 v1, 4, v1')
            e('v_mul_u32_u24 v2, 1152, v%d' % V_I)
            e('v_add_u32 v1, v1, v2')
            e('s_and_b32 s%d, s%d, 1' % (S_T0, S_W))
            e('s_mul_i32 s%d, s%d, 36864' % (S_T0, S_T0))
            e('s_sub_u32 s%d, 36864, s%d' % (S_T1, S_T0))
            e('v_add_u32 v%d, s%d, v1' % (V_XB + 0, S_T0))
            e('v_add_u32 v%d, s%d, v1' % (V_XB + 2, S_T1))
            e('v_xor_b32 v%d, 64, v%d' % (V_XB + 1, V_XB + 0))
            e('v_xor_b32 v%d, 64, v%d' % (V_XB + 3, V_XB + 2))
            for b in range(9):
                e('v_add_u32 v1, %d, v%d' % (64 * b, V_LANE))
                e('v_mul_u32_u24 v2, 911, v1')
                e('v_lshrrev_b32 v2, 16, v2')
                e('v_mul_u32_u24 v3, 72, v2')
                e('v_sub_u32 v1, v1, v3')
                e('v_lshrrev_b32 v3, 1, v2')
                e('v_xor_b32 v1, v1, v3')
                e('v_mul_u32_u24 v2, 1152, v2')
                e('v_lshl_add_u32 v%d, v1, 4, v2' % (100 + b))
                e('v_xor_b32 v%d, 64, v%d' % (109 + b, 100 + b))
        e('s_mul_i32 s%d, s%d, 18' % (S_T0, S_CB))
        if do_cons:
            e('s_add_u32 s%d, s%d, s%d' % (S_T1, S_T0, S_W))
            e('s_mul_i32 s%d, s%d, 12288' % (S_WB, S_T1))
            e('s_add_u32 s%d, s%d, %d' % (S_WB, S_WB, WS_DATA))
            e('s_lshr_b32 s%d, s%d, 1' % (S_T2, S_W))
            e('s_add_u32 s%d, s%d, s%d' % (S_T1, S_T0, S_T2))
            e('s_add_u32 s%d, s%d, 16' % (S_T1, S_T1))
            e('s_mul_i32 s%d, s%d, 12288' % (S_WH, S_T1))
            e('s_add_u32 s%d, s%d, %d' % (S_WH, S_WH, WS_DATA))
            e('s_mul_i32 s%d, s%d, 1152' % (S_T1, S_CB))
            e('s_lshl_b32 s%d, s%d, 6' % (S_T3, S_W))
            e('s_add_u32 s%d, s%d, s%d' % (S_SCB, S_T1, S_T3))
            e('s_lshl_b32 s%d, s%d, 6' % (S_T3, S_T2))
            e('s_add_u32 s%d, s%d, s%d' % (S_SCH, S_T1, S_T3))
            e('s_add_u32 s%d, s%d, 1024' % (S_SCH, S_SCH))
            e('s_mul_i32 s%d, s%d, %d' % (S_T3, S_RB, 64 * 9216))
            e('s_add_u32 s%d, s%d, s%d' % (S_T1, S_T1, S_T3))
            e('s_and_b32 s%d, s%d, 1' % (S_T3, S_W))
            e('s_mul_i32 s%d, s%d, %d' % (S_T3, S_T3, 2 * 147456))
            e('s_add_u32 s%d, s%d, s%d' % (S_O + 0, S_T1, S_T3))
            e('s_add_u32 s%d, s%d, 147456' % (S_O + 1, S_O + 0))
            e('s_sub_u32 s%d, %d, s%d' % (S_T3, 2 * 147456, S_T3))
            e('s_add_u32 s%d, s%d, s%d' % (S_O + 2, S_T1, S_T3))
            e('s_add_u32 s%d, s%d, 147456' % (S_O + 3, S_O + 2))
            e('s_lshl_b32 s%d, s%d, 6' % (S_T2, S_T2))
            e('s_add_u32 s%d, s%d, 1024' % (S_T2, S_T2))
            e('s_lshl_b32 s%d, s%d, 6' % (S_T3, S_W))
            e('s_sub_u32 s%d, s%d, s%d' % (S_T2, S_T2, S_T3))
            e('s_add_u32 s%d, s%d, s%d' % (S_OH + 0, S_O + 0, S_T2))
            e('s_add_u32 s%d, s%d, s%d' % (S_OH + 1, S_O + 1, S_T2))
            e('s_mov_b32 s%d, 2.0' % S_SCL)
        if do_prod:
            e('s_mov_b32 s%d, 0' % S_HAS)
            e('s_cmp_ge_u32 s%d, 27' % S_RB)
            e('s_cbranch_scc1 %s_notask' % name)
            e('s_mov_b32 s%d, 1' % S_HAS)
            e('s_cmp_ge_u32 s%d, 24' % S_RB)
            e('s_cbranch_scc1 %s_lasttask' % name)
            e('s_mul_i32 s%d, s%d, 43' % (S_T1, S_RB))
            e('s_lshr_b32 s%d, s%d, 8' % (S_T1, S_T1))
            e('s_mul_i32 s%d, s%d, 6' % (S_T2, S_T1))
            e('s_sub_u32 s%d, s%d, s%d' % (S_UU, S_RB, S_T2))
            e('s_lshl_b32 s%d, s%d, 2' % (S_P, S_T1))
            e('s_add_u32 s%d, s%d, s%d' % (S_P, S_P, S_W))
            e('s_branch %s_taskok' % name)
            e('%s_lasttask:' % name)
            e('s_sub_u32 s%d, s%d, 24' % (S_T1, S_RB))
            e('s_lshl_b32 s%d, s%d, 1' % (S_T1, S_T1))
            e('s_lshr_b32 s%d, s%d, 1' % (S_T2, S_W))
            e('s_add_u32 s%d, s%d, s%d' % (S_UU, S_T1, S_T2))
            e('s_and_b32 s%d, s%d, 1' % (S_P, S_W))
            e('s_add_u32 s%d, s%d, 16' % (S_P, S_P))
            e('%s_taskok:' % name)
            e('s_mul_i32 s%d, s%d, 576' % (S_T1, S_CB))
            e('s_lshl_b32 s%d, s%d, 5' % (S_T2, S_P))
            e('s_add_u32 s%d, s%d, s%d' % (S_T1, S_T1, S_T2))
            e('s_lshl_b32 s%d, s%d, 1' % (S_ZS, S_T1))
            e('s_lshl_b32 s%d, s%d, 2' % (S_T1, S_T1))
            e('s_mul_i32 s%d, s%d, %d' % (S_U, S_UU, 96 * 18432))
            e('s_add_u32 s%d, s%d, s%d' % (S_U, S_U, S_T1))
            e('s_add_u32 s%d, s%d, s%d' % (S_T1, S_T0, S_P))
            e('s_mul_i32 s%d, s%d, 12' % (S_T1, S_T1))
            e('s_lshl_b32 s%d, s%d, 1' % (S_T2, S_UU))
            e('s_add_u32 s%d, s%d, s%d' % (S_T1, S_T1, S_T2))
            e('s_lshl_b32 s%d, s%d, 10' % (S_US, S_T1))
            e('s_add_u32 s%d, s%d, %d' % (S_US, S_US, WS_DATA))
            e('%s_notask:' % name)
        e('s_lshl_b32 s%d, s%d, 8' % (S_NOFF, S_CB))
        e('s_waitcnt lgkmcnt(0)')
        self.stamp(1)
        if a.mode == 'H2':
            e('s_load_dword s%d, s[16:17], s%d' % (S_N, S_NOFF))
        self.srd(S_QW, 6, QW_BYTES)
        self.srd(S_ZP, 10, SC_BYTES)
        self.srd(S_WS, 16, WS_BYTES)
        self.srd(S_X, 4, X_BYTES)
        self.srd(S_SC, 8, SC_BYTES)
        self.srd(S_OUT, 12, OUT_BYTES)

    def unit_loads(self, name):
        a, e = self.a, self.e
        nt = ' nt' if a.qnt else ''
        self.vmem('buffer_load_dword v84, v%d, s[%d:%d], s%d offen' % (V_Z, S_ZP, S_ZP + 3, S_ZS), 'z')
        first = True
        for ks in range(3):
            for el in range(8):
                r = 36 + 2 * (8 * ks + el)
                if not first:
                    step = 18432 if el else 18432 * (32 - 7)
                    e('s_add_u32 s%d, s%d, %d' % (S_U, S_U, step))
                first = False
                self.vmem('buffer_load_dwordx2 v[%d:%d], v%d, s[%d:%d], s%d offen%s' % (r, r + 1, V_Q, S_QW, S_QW + 3, S_U, nt), 'unit')

    def x_dma(self):
        a, e = self.a, self.e
        nt = ' nt' if a.xnt else ''
        e('s_lshl_b32 s%d, s%d, 6' % (S_T0, S_RB))
        e('s_lshl_b32 s%d, s%d, 4' % (S_T1, S_W))
        e('s_add_u32 s%d, s%d, s%d' % (S_T0, S_T0, S_T1))
        e('s_mul_i32 s%d, s%d, 1152' % (S_T0, S_T0))
        e('s_mul_i32 s%d, s%d, %d' % (S_T1, S_W, 18 * 1024))
        for a2 in range(2):
            if a2:
                e('s_add_u32 s%d, s%d, %d' % (S_T0, S_T0, 8 * 1152))
            for b in range(9):
                e('s_add_u32 m0, s%d, %d' % (S_T1, (9 * a2 + b) * 1024))
                e('s_nop 0')
                self.vmem('buffer_load_dwordx4 v%d, s[%d:%d], s%d offen lds%s' % ((109 if a2 else 100) + b, S_X, S_X + 3, S_T0, nt), 'xdma')

    def pack_publish(self, name):
        a, e = self.a, self.e
        Z0, Z1, ZI0, ZI1, T0, T1, LO, HI, ACC, TM = 85, 86, 87, 88, 89, 90, 91, 92, 93, 94
        e(self.wait_vm('z'))
        e('v_lshlrev_b32 v%d, 16, v84' % Z0)
        e('v_and_b32 v%d, 0xffff0000, v84' % Z1)
        e('v_cvt_u32_f32 v%d, v%d' % (ZI0, Z0))
        e('v_cvt_u32_f32 v%d, v%d' % (ZI1, Z1))
        e('v_cvt_f32_u32 v%d, v%d' % (LO, ZI0))
        e('v_cvt_f32_u32 v%d, v%d' % (HI, ZI1))
        e('v_or_b32 v%d, v%d, v%d' % (ACC, ZI0, ZI1))
        e('v_cmp_neq_f32 s[%d:%d], v%d, v%d' % (S_T2, S_T3, LO, Z0))
        e('v_cmp_neq_f32 vcc, v%d, v%d' % (HI, Z1))
        e('v_sub_u32 v%d, 3, v%d' % (ZI0, ZI0))
        e('v_sub_u32 v%d, 3, v%d' % (ZI1, ZI1))
        e('s_or_b64 s[%d:%d], s[%d:%d], vcc' % (S_T2, S_T3, S_T2, S_T3))
        e('v_mov_b32 v%d, 0x00090a0b' % TM)
        e('s_mov_b32 s%d, 0x00030201' % S_T0)
        e('v_alignbyte_b32 v%d, s%d, v%d, v%d' % (T0, S_T0, TM, ZI0))
        e('v_alignbyte_b32 v%d, s%d, v%d, v%d' % (T1, S_T0, TM, ZI1))
        q = lambda ks, el, t: 36 + 2 * (8 * ks + el) + t
        for ks in range(3):
            n = self.vm.index('unit')
            need = n + 8 * (ks + 1) - 1
            e('s_waitcnt vmcnt(%d)' % (len(self.vm) - 1 - need))
            for el in range(0, 8):
                e('v_or3_b32 v%d, v%d, v%d, v%d' % (ACC, ACC, q(ks, el, 0), q(ks, el, 1)))
            for t in range(2):
                T = T0 if t == 0 else T1
                e('v_lshl_or_b32 v%d, v%d, 8, v%d' % (LO, q(ks, 6, t), q(ks, 4, t)))
                e('v_lshl_or_b32 v%d, v%d, 8, v%d' % (HI, q(ks, 7, t), q(ks, 5, t)))
                e('v_lshl_or_b32 v%d, v%d, 8, v%d' % (LO, LO, q(ks, 2, t)))
                e('v_lshl_or_b32 v%d, v%d, 8, v%d' % (HI, HI, q(ks, 3, t)))
                e('v_lshl_or_b32 v%d, v%d, 8, v%d' % (LO, LO, q(ks, 0, t)))
                e('v_lshl_or_b32 v%d, v%d, 8, v%d' % (HI, HI, q(ks, 1, t)))
                e('v_perm_b32 v%d, v%d, v%d, v%d' % (LO, T, T, LO))
                e('v_perm_b32 v%d, v%d, v%d, v%d' % (HI, T, T, HI))
                e('v_lshl_or_b32 v%d, v%d, 4, v%d' % (120 + 4 * t + ks, HI, LO))
        e('v_and_b32 v%d, 0xfffffffc, v%d' % (ACC, ACC))
        e('v_cmp_ne_u32 vcc, 0, v%d' % ACC)
        if a.mode == 'H2':
            e('s_waitcnt lgkmcnt(0)')
            e('s_xor_b32 s%d, s%d, 1' % (S_TAG, S_N))
        else:
            e('s_mov_b32 s%d, 0x5a5a5a5b' % S_TAG)
        e('s_or_b64 s[%d:%d], s[%d:%d], vcc' % (S_T2, S_T3, S_T2, S_T3))
        e('v_mov_b32 v123, s%d' % S_TAG)
        e('v_mov_b32 v127, s%d' % S_TAG)
        if a.mode == 'H2':
            e('s_cmp_lg_u64 s[%d:%d], 0' % (S_T2, S_T3))
            e('s_cbranch_scc1 %s_nopub' % name)
        st = ' sc1' if a.mode == 'H2' else ''
        self.vmem('buffer_store_dwordx4 v[120:123], v%d, s[%d:%d], s%d offen%s' % (V_S, S_WS, S_WS + 3, S_US, st), 'pub')
        self.vmem('buffer_store_dwordx4 v[124:127], v%d, s[%d:%d], s%d offen offset:1024%s' % (V_S, S_WS, S_WS + 3, S_US, st), 'pub')

    def xreg(self, s, sg):
        i = s * 4 + sg
        if s < 16:
            return 'a[%d:%d]' % (4 * i, 4 * i + 3)
        r = V_XX + 4 * (i - 64)
        return 'v[%d:%d]' % (r, r + 3)

    def x_reads(self):
        for s in range(18):
            for sg in range(4):
                base = V_XB + 2 * (sg >> 1) + (s & 1)
                off = (sg & 1) * 18432 + (s >> 1) * 128
                self.e('ds_read_b128 %s, v%d offset:%d' % (self.xreg(s, sg), base, off))

    def stage_params(self, kind, st):
        if kind == 'full':
            return dict(wadd=st * 4 * 12288, wb=S_WB, scb=S_SCB, scadd=256 * st, so=[S_O + i for i in range(4)], oimm=256 * st, nsig=4)
        return dict(wadd=0, wb=S_WH, scb=S_SCH, scadd=0, so=[S_OH, S_OH + 1], oimm=0, nsig=2)

    def slot_load_instrs(self, P, buf):
        L = []
        flags = ' sc1' if self.a.mode == 'H2' else ''
        for j in range(12):
            if j % 4 == 0:
                L.append(('s_add_u32 s%d, s%d, %d' % (S_L0 + j // 4, P['wb'], P['wadd'] + 4096 * (j // 4)), None))
        for j in range(12):
            r = V_SB[buf] + 4 * j
            off = (j % 4) * 1024
            L.append(('buffer_load_dwordx4 v[%d:%d], v%d, s[%d:%d], s%d offen%s%s' % (
                r, r + 3, V_S, S_WS, S_WS + 3, S_L0 + j // 4, (' offset:%d' % off) if off else '', flags), 'slot'))
        return L

    def xad_instrs(self, buf):
        L = []
        for j in range(12):
            r = V_SB[buf] + 4 * j + 3
            L.append('v_xad_u32 v%d, v%d, s%d, %s' % (V_BAD, r, S_TAG, '0' if j == 0 else 'v%d' % V_BAD))
        return L

    def acquire_loop(self, name, P, buf, lbl, back):
        e = self.e
        e('s_mov_b32 s%d, 0' % S_CNT)
        e('%s:' % lbl)
        for ins, tag in self.slot_load_instrs(P, buf):
            e(ins)
        e('s_waitcnt vmcnt(0)')
        for ins in self.xad_instrs(buf):
            e(ins)
        e('v_cmp_ne_u32 vcc, 0, v%d' % V_BAD)
        e('s_cbranch_vccz %s' % back)
        e('s_add_u32 s%d, s%d, 1' % (S_CNT, S_CNT))
        e('s_cmp_lt_u32 s%d, %d' % (S_CNT, self.a.limit))
        e('s_cbranch_scc1 %s' % lbl)
        e('s_branch %s_fallback' % name)

    def cvt_instrs(self, buf, s, fb):
        u, ks = s // 3, s % 3
        L = []
        for t in range(2):
            src = V_SB[buf] + 4 * (2 * u + t) + ks
            for j in range(4):
                L.append('v_cvt_scalef32_pk_bf16_fp4 v%d, v%d, s%d op_sel:[%d,%d,0]' % (V_F[fb] + 4 * t + j, src, S_SCL, j & 1, j >> 1))
        return L

    def unpack_instrs(self):
        L = []
        for r in range(4):
            L.append('v_lshlrev_b32 v%d, 16, v%d' % (V_SU + r, V_SR + r))
            L.append('v_and_b32 v%d, 0xffff0000, v%d' % (V_SU + 4 + r, V_SR + r))
        return L

    def epi_instrs(self, P, acset):
        out = []
        for sg in range(P['nsig']):
            L = []
            a0 = V_AC[acset] + 4 * sg
            a1 = V_AC[acset] + 16 + 4 * sg
            o = V_O[sg & 1]
            for r in range(4):
                L.append(('v_mul_f32 v%d, v%d, v%d' % (a0 + r, a0 + r, V_SU + r), None))
                L.append(('v_mul_f32 v%d, v%d, v%d' % (a1 + r, a1 + r, V_SU + 4 + r), None))
            for r in range(4):
                L.append(('v_cvt_pk_bf16_f32 v%d, v%d, v%d' % (o + r, a0 + r, a1 + r), None))
            imm = (' offset:%d' % P['oimm']) if P['oimm'] else ''
            L.append(('buffer_store_dwordx4 v[%d:%d], v%d, s[%d:%d], s%d offen%s%s' % (
                o, o + 3, V_OO, S_OUT, S_OUT + 3, P['so'][sg], imm, self.a.oflags), 'out'))
            out.append(L)
        return out

    def scale_load(self, P):
        L = []
        L.append(('s_add_u32 s%d, s%d, %d' % (S_T0, P['scb'], P['scadd']), None))
        L.append(('buffer_load_dwordx4 v[%d:%d], v%d, s[%d:%d], s%d offen' % (V_SR, V_SR + 3, V_C, S_SC, S_SC + 3, S_T0), 'scale'))
        return L

    def mfmas(self, P, acset, s, fb, last=False):
        L = []
        order = [(t, sg) for t in range(2) for sg in range(P['nsig'])]
        if self.a.morder == 'sig' or (last and self.a.lastsig):
            order = [(t, sg) for sg in range(P['nsig']) for t in range(2)]
        for t, sg in order:
            ac = V_AC[acset] + 16 * t + 4 * sg
            f = V_F[fb] + 4 * t
            c = '0' if s == 0 else 'v[%d:%d]' % (ac, ac + 3)
            L.append('v_mfma_f32_16x16x32_bf16 v[%d:%d], v[%d:%d], %s, %s' % (ac, ac + 3, f, f + 3, self.xreg(s, sg), c))
        return L

    def stage(self, name, n, stages):
        a = self.a
        kind, st = stages[n]
        P = self.stage_params(kind, st)
        prevP = self.stage_params(*stages[n - 1]) if n > 0 else None
        nextP = self.stage_params(*stages[n + 1]) if n + 1 < len(stages) else None
        buf, acs = n & 1, n & 1
        Q = [[] for _ in range(18)]
        if nextP:
            ld = self.slot_load_instrs(nextP, buf ^ 1)
            sal, lds = ld[:3], ld[3:]
            Q[0] += sal
            for j, x in enumerate(lds):
                Q[j // 3].append(x)
        if prevP:
            Q[0] += [(x, None) for x in self.unpack_instrs()]
        Q[4] += self.scale_load(P)
        if prevP:
            ep = self.epi_instrs(prevP, acs ^ 1)
            ns = len(ep)
            flat = []
            for L in ep:
                flat += L
            k0, k1 = 1, 13
            per = -(-len(flat) // (k1 - k0))
            pos = 0
            k = k0
            cnt = 0
            for x in flat:
                if x[1] == 'out' and k < 5:
                    k = 5
                    cnt = 0
                Q[k].append(x)
                cnt += 1
                if cnt >= per and k < k1:
                    k += 1
                    cnt = 0
        if nextP and a.mode == 'H2':
            Q[14].append(('WAIT', 'slot+scale'))
            xa = self.xad_instrs(buf ^ 1)
            Q[14] += [(x, None) for x in xa[:5]]
            Q[15] += [(x, None) for x in xa[5:]]
            Q[16].append(('v_cmp_ne_u32 vcc, 0, v%d' % V_BAD, None))
            Q[16].append(('BRANCH', n + 1))
        elif nextP:
            Q[14].append(('WAIT', 'slot+scale'))
        else:
            Q[14].append(('WAIT', 'scale'))
            Q[15] += [(x, None) for x in self.unpack_instrs()]
        for s in range(18):
            fb = s & 1
            M = self.mfmas(P, acs, s, fb, last=(s == 17 and not nextP))
            if s < 17:
                C = self.cvt_instrs(buf, s + 1, fb ^ 1)
            elif nextP:
                C = self.cvt_instrs(buf ^ 1, 0, fb ^ 1)
            else:
                C = []
            ng = len(M)
            cper = -(-len(C) // ng) if C else 0
            others = list(Q[s])
            for g, m in enumerate(M):
                self.e(m)
                fill = []
                fill += [(c, None) for c in C[g * cper:(g + 1) * cper]]
                take = -(-len(others) // (ng - g))
                fill += others[:take]
                others = others[take:]
                for ins, tag in fill:
                    if ins == 'WAIT':
                        if tag == 'slot+scale':
                            self.e(self.wait_vm('scale'))
                        else:
                            self.e(self.wait_vm(tag))
                    elif ins == 'BRANCH':
                        self.e('s_cbranch_vccnz %s_retry%d' % (name, tag))
                        self.e('%s_back%d:' % (name, tag))
                        self.retry.append((tag, nextP, buf ^ 1))
                    elif tag:
                        self.vmem(ins, tag)
                    else:
                        self.e(ins)
            assert not others
        return P

    def final_epilogue(self, name, P, acs):
        e = self.e
        e('s_nop 7')
        for L in self.epi_instrs(P, acs):
            for ins, tag in L:
                if tag:
                    self.vmem(ins, tag)
                else:
                    e(ins)

    def nonce_bump(self):
        e = self.e
        if self.a.mode != 'H2':
            return
        e('s_cmp_lg_u32 s%d, 0' % S_W)
        e('s_cbranch_scc1 NB_%d' % id(self))
        e('v_mov_b32 v1, s%d' % S_NOFF)
        e('v_mov_b32 v2, 2')
        e('s_mov_b64 s[%d:%d], exec' % (S_T2, S_T3))
        e('s_mov_b64 exec, 1')
        e('buffer_atomic_add v2, v1, s[%d:%d], 0 offen sc1' % (S_WS, S_WS + 3))
        e('s_mov_b64 exec, s[%d:%d]' % (S_T2, S_T3))
        e('NB_%d:' % id(self))

    def fallback(self, name):
        e = self.e
        e('%s_fallback:' % name)
        e('s_waitcnt vmcnt(0) lgkmcnt(0)')
        S_J, S_K, S_COL = S_L0, S_L0 + 1, S_L0 + 2
        A = V_AC[0]
        QV = 36
        FA = 52
        XF = 60
        ZS = 76
        TM = 80
        e('s_mov_b32 s%d, 0' % S_J)
        e('%s_fb_job:' % name)
        e('s_lshl_b32 s%d, s%d, 2' % (S_T0, S_J))
        e('s_add_u32 s%d, s%d, s%d' % (S_T0, S_T0, S_W))
        e('s_lshr_b32 s%d, s%d, 1' % (S_T1, S_W))
        e('s_add_u32 s%d, s%d, 16' % (S_T1, S_T1))
        e('s_cmp_lt_u32 s%d, 4' % S_J)
        e('s_cselect_b32 s%d, s%d, s%d' % (S_P, S_T0, S_T1))
        e('s_mul_i32 s%d, s%d, 576' % (S_COL, S_CB))
        e('s_lshl_b32 s%d, s%d, 5' % (S_T0, S_P))
        e('s_add_u32 s%d, s%d, s%d' % (S_COL, S_COL, S_T0))
        e('s_lshl_b32 s%d, s%d, 1' % (S_T0, S_COL))
        e('buffer_load_dword v%d, v%d, s[%d:%d], s%d offen' % (TM, V_Z, S_ZP, S_ZP + 3, S_T0))
        e('buffer_load_dword v%d, v%d, s[%d:%d], s%d offen' % (TM + 1, V_Z, S_SC, S_SC + 3, S_T0))
        for r in range(32):
            e('v_mov_b32 v%d, 0' % (A + r))
        e('s_waitcnt vmcnt(0)')
        e('v_lshlrev_b32 v%d, 16, v%d' % (ZS, TM))
        e('v_and_b32 v%d, 0xffff0000, v%d' % (ZS + 1, TM))
        e('v_lshlrev_b32 v%d, 16, v%d' % (ZS + 2, TM + 1))
        e('v_and_b32 v%d, 0xffff0000, v%d' % (ZS + 3, TM + 1))
        e('s_lshl_b32 s%d, s%d, 2' % (S_U, S_COL))
        e('s_mov_b32 s%d, 0' % S_K)
        e('%s_fb_k:' % name)
        for el in range(8):
            e('buffer_load_dwordx2 v[%d:%d], v%d, s[%d:%d], s%d offen' % (QV + 2 * el, QV + 2 * el + 1, V_Q, S_QW, S_QW + 3, S_U))
            e('s_add_u32 s%d, s%d, %d' % (S_U, S_U, 18432 if el < 7 else 18432 * 25))
        e('s_lshr_b32 s%d, s%d, 1' % (S_T0, S_K))
        e('s_lshl_b32 s%d, s%d, 7' % (S_T0, S_T0))
        e('s_and_b32 s%d, s%d, 1' % (S_T1, S_K))
        e('s_lshl_b32 s%d, s%d, 6' % (S_T1, S_T1))
        e('v_add_u32 v%d, s%d, v%d' % (TM, S_T0, V_XB))
        e('v_add_u32 v%d, s%d, v%d' % (TM + 1, S_T0, V_XB + 2))
        e('v_xor_b32 v%d, s%d, v%d' % (TM, S_T1, TM))
        e('v_xor_b32 v%d, s%d, v%d' % (TM + 1, S_T1, TM + 1))
        for sg in range(4):
            e('ds_read_b128 v[%d:%d], v%d offset:%d' % (XF + 4 * sg, XF + 4 * sg + 3, TM + (sg >> 1), (sg & 1) * 18432))
        e('s_waitcnt vmcnt(0)')
        for t in range(2):
            for h in range(4):
                qa, qb = QV + 2 * (2 * h) + t, QV + 2 * (2 * h + 1) + t
                x0, x1 = TM + 2, TM + 3
                e('v_cvt_f32_i32 v%d, v%d' % (x0, qa))
                e('v_cvt_f32_i32 v%d, v%d' % (x1, qb))
                e('v_cvt_pk_bf16_f32 v%d, v%d, v%d' % (x1, x0, x1))
                e('v_lshlrev_b32 v%d, 16, v%d' % (x0, x1))
                e('v_and_b32 v%d, 0xffff0000, v%d' % (x1, x1))
                e('v_sub_f32 v%d, v%d, v%d' % (x0, x0, ZS + t))
                e('v_sub_f32 v%d, v%d, v%d' % (x1, x1, ZS + t))
                e('v_cvt_pk_bf16_f32 v%d, v%d, v%d' % (x1, x0, x1))
                e('v_lshlrev_b32 v%d, 16, v%d' % (x0, x1))
                e('v_and_b32 v%d, 0xffff0000, v%d' % (x1, x1))
                e('v_mul_f32 v%d, v%d, v%d' % (x0, x0, ZS + 2 + t))
                e('v_mul_f32 v%d, v%d, v%d' % (x1, x1, ZS + 2 + t))
                e('v_cvt_pk_bf16_f32 v%d, v%d, v%d' % (FA + 4 * t + h, x0, x1))
        e('s_waitcnt lgkmcnt(0)')
        e('s_nop 1')
        for t in range(2):
            for sg in range(4):
                ac = A + 16 * t + 4 * sg
                e('v_mfma_f32_16x16x32_bf16 v[%d:%d], v[%d:%d], v[%d:%d], v[%d:%d]' % (
                    ac, ac + 3, FA + 4 * t, FA + 4 * t + 3, XF + 4 * sg, XF + 4 * sg + 3, ac, ac + 3))
        e('s_add_u32 s%d, s%d, 1' % (S_K, S_K))
        e('s_cmp_lt_u32 s%d, 18' % S_K)
        e('s_cbranch_scc1 %s_fb_k' % name)
        e('s_nop 7')
        e('s_nop 1')
        e('s_lshl_b32 s%d, s%d, 8' % (S_T0, S_J))
        e('s_cmp_lt_u32 s%d, 4' % S_J)
        e('s_cbranch_scc0 %s_fb_half' % name)
        for sg in range(4):
            o = V_O[sg & 1]
            for r in range(4):
                e('v_cvt_pk_bf16_f32 v%d, v%d, v%d' % (o + r, A + 4 * sg + r, A + 16 + 4 * sg + r))
            e('s_add_u32 s%d, s%d, s%d' % (S_T1, S_O + sg, S_T0))
            e('buffer_store_dwordx4 v[%d:%d], v%d, s[%d:%d], s%d offen' % (o, o + 3, V_OO, S_OUT, S_OUT + 3, S_T1))
        e('s_waitcnt vmcnt(0)')
        e('s_add_u32 s%d, s%d, 1' % (S_J, S_J))
        e('s_branch %s_fb_job' % name)
        e('%s_fb_half:' % name)
        for sg in range(2):
            o = V_O[sg & 1]
            for r in range(4):
                e('v_cvt_pk_bf16_f32 v%d, v%d, v%d' % (o + r, A + 4 * sg + r, A + 16 + 4 * sg + r))
            e('buffer_store_dwordx4 v[%d:%d], v%d, s[%d:%d], s%d offen' % (o, o + 3, V_OO, S_OUT, S_OUT + 3, S_OH + sg))
        self.nonce_bump_lbl(name + '_fb')
        e('s_endpgm')

    def nonce_bump_lbl(self, lbl):
        e = self.e
        if self.a.mode != 'H2':
            return
        e('s_cmp_lg_u32 s%d, 0' % S_W)
        e('s_cbranch_scc1 %s_nb' % lbl)
        e('v_mov_b32 v1, s%d' % S_NOFF)
        e('v_mov_b32 v2, 2')
        e('s_mov_b64 exec, 1')
        e('buffer_atomic_add v2, v1, s[%d:%d], 0 offen sc1' % (S_WS, S_WS + 3))
        e('s_mov_b64 exec, -1')
        e('%s_nb:' % lbl)

    def write_stamps(self, name):
        if not self.a.stamps:
            return
        e = self.e
        e('s_waitcnt lgkmcnt(0)')
        for k in range(8):
            e('v_mov_b32 v%d, s%d' % (36 + k, S_STAMP + 2 * k))
        e('s_lshl_b32 s%d, s2, 2' % S_T0)
        e('s_add_u32 s%d, s%d, s%d' % (S_T0, S_T0, S_W))
        e('s_lshl_b32 s%d, s%d, 5' % (S_T0, S_T0))
        e('s_add_u32 s%d, s%d, %d' % (S_T0, S_T0, WS_STAMP))
        e('v_mov_b32 v1, 0')
        e('s_mov_b64 exec, 1')
        e('buffer_store_dwordx4 v[36:39], v1, s[%d:%d], s%d offen' % (S_WS, S_WS + 3, S_T0))
        e('buffer_store_dwordx4 v[40:43], v1, s[%d:%d], s%d offen offset:16' % (S_WS, S_WS + 3, S_T0))
        e('s_mov_b64 exec, -1')

    def kernel(self, name, do_prod, do_cons):
        a, e = self.a, self.e
        self.vm = []
        self.retry = []
        e('.text')
        e('.globl %s' % name)
        e('.p2align 8')
        e('.type %s,@function' % name)
        e('%s:' % name)
        n = name.replace('standalone__weight_only_int_quip_2__prompt_kernel', 'K')
        self.prologue(n, do_prod, do_cons)
        if do_prod:
            e('s_cmp_eq_u32 s%d, 0' % S_HAS)
            e('s_cbranch_scc1 %s_nounit' % n)
            base = list(self.vm)
            self.unit_loads(n)
            if do_cons:
                self.x_dma()
            self.pack_publish(n)
            self.stamp(2)
            if do_cons:
                e(self.wait_vm('xdma'))
                e('s_branch %s_xready' % n)
                e('%s_nopub:' % n)
                e('s_waitcnt vmcnt(0)')
                e('s_branch %s_xready' % n)
                e('%s_nounit:' % n)
                self.x_dma()
                if a.mode == 'H2':
                    e('s_waitcnt lgkmcnt(0)')
                    e('s_xor_b32 s%d, s%d, 1' % (S_TAG, S_N))
                self.stamp(2)
                e('s_waitcnt vmcnt(0)')
                e('%s_xready:' % n)
            else:
                e('%s_nopub:' % n)
                e('%s_nounit:' % n)
        elif do_cons:
            self.x_dma()
            e('s_waitcnt vmcnt(0)')
        if do_cons:
            self.vm = []
            e('s_barrier')
            self.stamp(3)
            self.x_reads()
            stages = [('full', i) for i in range(4)]
            stages = ([('half', 0)] + stages) if a.halffirst else (stages + [('half', 0)])
            P0 = self.stage_params(*stages[0])
            if a.mode == 'H2':
                e('s_mov_b32 s%d, 0' % S_CNT)
                e('s_add_u32 s%d, s%d, %d' % (S_L0 + 2, P0['wb'], P0['wadd'] + 8192))
                e('%s_poll:' % n)
                r = V_SB[0] + 44
                e('buffer_load_dwordx4 v[%d:%d], v%d, s[%d:%d], s%d offen offset:3072 sc1' % (r, r + 3, V_S, S_WS, S_WS + 3, S_L0 + 2))
                e('s_waitcnt vmcnt(0)')
                e('v_cmp_ne_u32 vcc, s%d, v%d' % (S_TAG, r + 3))
                e('s_cbranch_vccz %s_polled' % n)
                e('s_add_u32 s%d, s%d, 1' % (S_CNT, S_CNT))
                e('s_cmp_lt_u32 s%d, %d' % (S_CNT, a.limit))
                e('s_cbranch_scc1 %s_poll' % n)
                e('s_branch %s_fallback' % n)
                e('%s_polled:' % n)
                self.stamp(4)
                self.acquire_loop(n, P0, 0, '%s_acq0' % n, '%s_back0' % n)
                e('%s_back0:' % n)
            else:
                for ins, tag in self.slot_load_instrs(P0, 0):
                    e(ins)
                e('s_waitcnt vmcnt(0)')
            self.stamp(5)
            e('s_waitcnt lgkmcnt(0)')
            for c in self.cvt_instrs(0, 0, 0):
                e(c)
            e('s_nop 1')
            self.vm = []
            for i in range(len(stages)):
                if i == len(stages) - 1:
                    pass
                P = self.stage(n, i, stages)
            self.stamp(6)
            self.nonce_bump_lbl(n + '_end')
            self.final_epilogue(n, P, (len(stages) - 1) & 1)
            if a.stamps:
                e('s_waitcnt vmcnt(0)')
                self.stamp(7)
        if a.spin or a.amp:
            e('s_cmp_lg_u32 s2, %d' % a.ampwg)
            e('s_cbranch_scc1 %s_nospin' % n)
            e('s_cmp_lg_u32 s%d, 0' % S_W)
            e('s_cbranch_scc1 %s_nospin' % n)
            e('s_waitcnt lgkmcnt(0)')
            if a.spin:
                e('s_add_u32 s%d, s%d, %d' % (S_T0, S_STAMP, a.spin))
            else:
                k, f = [int(v) for v in a.amp.split(',')]
                e('s_sub_u32 s%d, s%d, s%d' % (S_T0, S_STAMP + 2 * k, S_STAMP))
                e('s_mul_i32 s%d, s%d, %d' % (S_T0, S_T0, f))
                e('s_add_u32 s%d, s%d, s%d' % (S_T0, S_T0, S_STAMP))
            e('%s_spin:' % n)
            e('s_memrealtime s[%d:%d]' % (S_T2, S_T3))
            e('s_waitcnt lgkmcnt(0)')
            e('s_sub_u32 s%d, s%d, s%d' % (S_T1, S_T2, S_T0))
            e('s_cmp_lt_i32 s%d, 0' % S_T1)
            e('s_cbranch_scc1 %s_spin' % n)
            e('%s_nospin:' % n)
        self.write_stamps(n)
        e('%s_done:' % n)
        e('s_endpgm')
        if do_cons:
            for tag, P, buf in self.retry:
                self.acquire_loop(n, P, buf, '%s_retry%d' % (n, tag), '%s_back%d' % (n, tag))
            self.fallback(n)
        e('%s_end:' % n)
        e('s_nop 0')
        e('.section .rodata,"a"')
        e('.p2align 6')
        e('.amdhsa_kernel %s' % name)
        e('  .amdhsa_next_free_vgpr 512')
        e('  .amdhsa_next_free_sgpr 96')
        e('  .amdhsa_accum_offset 256')
        e('  .amdhsa_group_segment_fixed_size 0')
        e('  .amdhsa_float_denorm_mode_32 3')
        e('  .amdhsa_kernarg_size 56')
        e('  .amdhsa_user_sgpr_count 2')
        e('  .amdhsa_user_sgpr_kernarg_segment_ptr 1')
        e('  .amdhsa_system_sgpr_workgroup_id_x 1')
        e('.end_amdhsa_kernel')

    def build(self):
        a = self.a
        H = []
        H.append('; weight-only int2 GEMM: out = x @ ((qw - zeros) * scales), M=2048 K=576 N=4608 (generated by my own script)')
        if a.mode == 'H2':
            H.append('; @launch grid=(256,1,1) block=(256,1,1) lds=%d' % LDS_BYTES)
        else:
            H.append('; @launch kernel=pack_kernel grid=(256,1,1) block=(256,1,1) lds=0')
            H.append('; @launch kernel=%s grid=(256,1,1) block=(256,1,1) lds=%d' % (KN, LDS_BYTES))
        H.append('.amdgcn_target "amdgcn-amd-amdhsa--gfx950"')
        if a.mode == 'H2':
            self.kernel(KN, True, True)
        else:
            self.kernel('pack_kernel', True, False)
            self.kernel(KN, False, True)
        body = []
        for l in self.L:
            if l.endswith(':') or l.startswith('.'):
                body.append(l)
            else:
                body.append('    ' + l)
        return '\n'.join(H + body) + '\n'


def main():
    ap = argparse.ArgumentParser()
    ap.add_argument('-o', default='h2.s')
    ap.add_argument('--mode', default='H2')
    ap.add_argument('--R', type=int, default=8)
    ap.add_argument('--stamps', action='store_true')
    ap.add_argument('--nopf', dest='pf', action='store_false')
    ap.add_argument('--qnt', type=int, default=1)
    ap.add_argument('--xnt', type=int, default=0)
    ap.add_argument('--oflags', default=' sc1')
    ap.add_argument('--halffirst', type=int, default=1)
    ap.add_argument('--morder', default='t')
    ap.add_argument('--lastsig', type=int, default=0)
    ap.add_argument('--limit', type=int, default=4096)
    ap.add_argument('--spin', type=int, default=0)
    ap.add_argument('--amp', default='')
    ap.add_argument('--ampwg', type=int, default=0)
    a = ap.parse_args()
    if a.oflags and not a.oflags.startswith(' '):
        a.oflags = ' ' + a.oflags
    if a.oflags.strip() == 'none':
        a.oflags = ''
    g = Gen(a)
    open(a.o, 'w').write(g.build())


if __name__ == '__main__':
    main()
```

```python
import argparse

KN = 'standalone__weight_only_int_quip_2__prompt_kernel'
X_BYTES, QW_BYTES, SC_BYTES, OUT_BYTES, WS_BYTES = 2359296, 10616832, 9216, 18874368, 268435456
WS_DATA = 4096
WS_STAMP = 0x200000
LDS_X = 73728
LDS_ST = LDS_X
LDS_Q = LDS_X + 65536
LDS_BYTES = LDS_Q + 8192

S_DEF = 15
S_T5 = 16
S_PASS = 17
S_FB = 18
S_SEC = 19
S_X, S_QW, S_SC, S_ZP, S_OUT, S_WS, S_CODE = 20, 24, 28, 32, 36, 40, 44
S_W, S_RB, S_CB, S_T0, S_T1, S_TAG, S_N, S_CNT = 48, 49, 50, 51, 52, 53, 54, 55
S_O = 56
S_OQ = 60
S_HQ = 61
S_WB, S_WQ = 62, 63
S_L0 = 64
S_SCB, S_SCQ = 67, 68
S_U, S_US, S_ZS, S_HAS, S_P, S_UU = 69, 70, 71, 72, 73, 74
S_SCL = 75
S_STAMP = 76
S_T2, S_T3 = 92, 93
S_NOFF, S_T4 = 94, 95
V_HINT, V_NBO, V_NBV, V_HV = 0, 1, 2, 3
V_XX = 4
V_SB = (36, 84)
V_AC = (132, 164)
V_F = (196, 204)
V_SR = 212
V_SU = 216
V_O = (224, 228)
V_O2 = (232, 236)
V_XB = 240
V_CQ, V_TWQ = 242, 243
V_S, V_C, V_OOA, V_OOB, V_BAD, V_LANE = 244, 246, 247, 248, 249, 250
V_TWA, V_TWB, V_TR = 251, 252, 254
V_I, V_G = 245, 253
V_TW6, V_OO6 = 245, 253
V_DUMMY = 255
V_UQ = 84
V_UZ = 132
V_UR = 144
V_PQ, V_PZ, V_PS, V_PS2 = 152, 153, 154, 155
V_PR = 156
V_DM9 = 164
T1, T2, T3 = 176, 177, 178


class Item:
    def __init__(self, text, cost, rel, dl, tag=None, pred=None, kind=None):
        self.text, self.cost, self.rel, self.dl, self.tag, self.kind = text, cost, rel, dl, tag, kind
        if pred is None:
            pred = []
        elif not isinstance(pred, list):
            pred = [pred]
        self.pred = [p if isinstance(p, tuple) else (p, 0) for p in pred
                     if p is not None and (not isinstance(p, tuple) or p[0] is not None)]
        self.done = False
        self.gap = None


class Gen:
    def __init__(self, a):
        self.a = a
        self.L = []
        self.vm = []
        self.lg = []
        self.retry = []

    def e(self, s):
        self.L.append(s)

    def vmem(self, s, tag):
        self.L.append(s)
        self.vm.append(tag)

    def wait_vm(self, *tags):
        idx = max(i for i, t in enumerate(self.vm) if t in tags)
        n = len(self.vm) - 1 - idx
        assert n <= 63
        return 's_waitcnt vmcnt(%d)' % n

    def stamp(self, k, st='A'):
        ss = self.a.stampset
        if ss == 'E':
            if k == 0 and self.a.stamps:
                for j in range(8):
                    self.e('s_mov_b32 s%d, 0' % (S_STAMP + 2 * j))
            return
        if self.a.stamps and (ss == st or k == 0 or (ss == 'C' and st == 'B')):
            self.e('%s s[%d:%d]' % ('s_memtime' if ss == 'C' else 's_memrealtime', S_STAMP + 2 * k, S_STAMP + 2 * k + 1))

    def make_tag(self):
        self.e('s_mul_i32 s%d, s%d, 0x9e3779b1' % (S_TAG, S_N))
        self.e('s_add_u32 s%d, s%d, 0x7f4a7c15' % (S_TAG, S_TAG))

    def task_full(self):
        e = self.e
        e('s_mul_i32 s%d, s%d, 171' % (S_T2, S_T1))
        e('s_lshr_b32 s%d, s%d, 12' % (S_T2, S_T2))
        e('s_mul_i32 s%d, s%d, 24' % (S_T3, S_T2))
        e('s_sub_u32 s%d, s%d, s%d' % (S_T1, S_T1, S_T3))
        e('s_lshr_b32 s%d, s%d, 2' % (S_UU, S_T1))
        e('s_and_b32 s%d, s%d, 3' % (S_T1, S_T1))
        e('s_lshr_b32 s%d, s%d, 1' % (S_P, S_T2))
        e('s_lshl_b32 s%d, s%d, 3' % (S_P, S_P))
        e('s_and_b32 s%d, s%d, 1' % (S_T2, S_T2))
        e('s_add_u32 s%d, s%d, s%d' % (S_P, S_P, S_T2))
        e('v_lshlrev_b32 v%d, 8, v%d' % (T1, V_G))
        e('v_lshl_add_u32 v%d, v%d, 3, v%d' % (V_PQ, V_I, T1))
        for el in range(1, 8):
            e('v_add_u32 v%d, %d, v%d' % (V_PR + el - 1, 18432 * el, V_PQ))
        e('s_mul_i32 s%d, s%d, 96' % (S_T2, S_UU))
        e('s_lshl_b32 s%d, s%d, 3' % (S_T3, S_T1))
        e('s_add_u32 s%d, s%d, s%d' % (S_T2, S_T2, S_T3))
        e('s_mul_i32 s%d, s%d, 18432' % (S_U, S_T2))
        e('s_mul_i32 s%d, s%d, 576' % (S_T2, S_CB))
        e('s_lshl_b32 s%d, s%d, 5' % (S_T3, S_P))
        e('s_add_u32 s%d, s%d, s%d' % (S_T2, S_T2, S_T3))
        e('s_lshl_b32 s%d, s%d, 1' % (S_ZS, S_T2))
        e('s_lshl_b32 s%d, s%d, 2' % (S_T2, S_T2))
        e('s_add_u32 s%d, s%d, s%d' % (S_U, S_U, S_T2))
        e('v_lshrrev_b32 v%d, 1, v%d' % (V_PZ, V_PQ))
        e('v_mul_u32_u24 v%d, 24576, v%d' % (V_PS, V_G))
        e('v_lshl_add_u32 v%d, v%d, 4, v%d' % (V_PS, V_I, V_PS))
        e('v_add_u32 v%d, 1024, v%d' % (V_PS2, V_PS))
        e('s_mul_i32 s%d, s%d, 18' % (S_T2, S_CB))
        e('s_add_u32 s%d, s%d, s%d' % (S_T2, S_T2, S_P))
        e('s_mul_i32 s%d, s%d, 12' % (S_T2, S_T2))
        e('s_lshl_b32 s%d, s%d, 1' % (S_T3, S_UU))
        e('s_add_u32 s%d, s%d, s%d' % (S_T2, S_T2, S_T3))
        e('s_lshl_b32 s%d, s%d, 10' % (S_US, S_T2))
        e('s_lshl_b32 s%d, s%d, 8' % (S_T1, S_T1))
        e('s_add_u32 s%d, s%d, s%d' % (S_US, S_US, S_T1))
        e('s_add_u32 s%d, s%d, %d' % (S_US, S_US, WS_DATA))

    def task_quad(self):
        e = self.e
        e('s_sub_u32 s%d, s%d, 1' % (S_T1, S_SEC))
        e('s_lshr_b32 s%d, s%d, 1' % (S_UU, S_T1))
        e('s_and_b32 s%d, s%d, 1' % (S_T1, S_T1))
        e('v_and_b32 v%d, 31, v%d' % (T1, V_LANE))
        e('v_lshrrev_b32 v%d, 5, v%d' % (T2, V_LANE))
        e('v_mul_u32_u24 v%d, 147456, v%d' % (T3, T2))
        e('v_lshl_add_u32 v%d, v%d, 3, v%d' % (V_PQ, T1, T3))
        for el in range(1, 8):
            e('v_add_u32 v%d, %d, v%d' % (V_PR + el - 1, 18432 * el, V_PQ))
        e('s_mul_i32 s%d, s%d, 96' % (S_T2, S_UU))
        e('s_lshl_b32 s%d, s%d, 4' % (S_T3, S_T1))
        e('s_add_u32 s%d, s%d, s%d' % (S_T2, S_T2, S_T3))
        e('s_mul_i32 s%d, s%d, 18432' % (S_U, S_T2))
        e('s_mul_i32 s%d, s%d, 576' % (S_T2, S_CB))
        e('s_add_u32 s%d, s%d, 512' % (S_T2, S_T2))
        e('s_lshl_b32 s%d, s%d, 1' % (S_ZS, S_T2))
        e('s_lshl_b32 s%d, s%d, 2' % (S_T2, S_T2))
        e('s_add_u32 s%d, s%d, s%d' % (S_U, S_U, S_T2))
        e('v_lshlrev_b32 v%d, 2, v%d' % (V_PZ, T1))
        e('v_lshrrev_b32 v%d, 3, v%d' % (T3, T1))
        e('v_mul_u32_u24 v%d, 6144, v%d' % (T3, T3))
        e('v_lshl_add_u32 v%d, v%d, 8, v%d' % (T3, T2, T3))
        e('v_and_b32 v%d, 7, v%d' % (T1, T1))
        e('v_lshl_add_u32 v%d, v%d, 5, v%d' % (V_PS, T1, T3))
        e('v_add_u32 v%d, 16, v%d' % (V_PS2, V_PS))
        e('s_mul_i32 s%d, s%d, 18' % (S_T2, S_CB))
        e('s_add_u32 s%d, s%d, 16' % (S_T2, S_T2))
        e('s_mul_i32 s%d, s%d, 12288' % (S_US, S_T2))
        e('s_lshl_b32 s%d, s%d, 10' % (S_T3, S_UU))
        e('s_add_u32 s%d, s%d, s%d' % (S_US, S_US, S_T3))
        e('s_lshl_b32 s%d, s%d, 9' % (S_T1, S_T1))
        e('s_add_u32 s%d, s%d, s%d' % (S_US, S_US, S_T1))
        e('s_add_u32 s%d, s%d, %d' % (S_US, S_US, WS_DATA))

    def prologue0(self, n):
        a, e = self.a, self.e
        e('s_cmp_ge_u32 s2, 256')
        e('s_cbranch_scc1 %s_done' % n)
        e('s_load_dwordx2 s[%d:%d], s[0:1], 8' % (S_QW, S_QW + 1))
        e('s_load_dwordx2 s[%d:%d], s[0:1], 0' % (S_X, S_X + 1))
        e('s_load_dwordx2 s[%d:%d], s[0:1], 24' % (S_ZP, S_ZP + 1))
        e('s_load_dwordx2 s[%d:%d], s[0:1], 48' % (S_WS, S_WS + 1))
        e('s_load_dwordx2 s[%d:%d], s[0:1], 16' % (S_SC, S_SC + 1))
        e('s_load_dwordx2 s[%d:%d], s[0:1], 32' % (S_OUT, S_OUT + 1))
        self.stamp(0)
        e('v_lshrrev_b32 v%d, 6, v0' % T1)
        e('v_and_b32 v%d, 63, v0' % V_LANE)
        e('v_readfirstlane_b32 s%d, v%d' % (S_W, T1))
        for r, nb in ((S_QW, QW_BYTES), (S_X, X_BYTES), (S_ZP, SC_BYTES), (S_WS, WS_BYTES), (S_SC, SC_BYTES), (S_OUT, OUT_BYTES)):
            e('s_mov_b32 s%d, %d' % (r + 2, nb))
            e('s_mov_b32 s%d, 0x00020000' % (r + 3))
        e('s_and_b32 s%d, s2, 7' % S_T0)
        e('s_lshr_b32 s%d, s2, 3' % S_T1)
        e('s_lshl_b32 s%d, s%d, 2' % (S_RB, S_T0))
        e('s_and_b32 s%d, s%d, 3' % (S_T2, S_T1))
        e('s_add_u32 s%d, s%d, s%d' % (S_RB, S_RB, S_T2))
        e('s_lshr_b32 s%d, s%d, 2' % (S_CB, S_T1))
        e('v_and_b32 v%d, 15, v%d' % (V_I, V_LANE))
        e('v_lshrrev_b32 v%d, 4, v%d' % (V_G, V_LANE))
        e('s_lshl_b32 s%d, s%d, 8' % (S_NOFF, S_CB))
        e('s_mov_b32 s%d, 0' % S_FB)
        e('s_mov_b32 s%d, 0' % S_SEC)
        e('s_mov_b32 s%d, 0' % S_DEF)
        e('s_mov_b32 s%d, 0' % S_HAS)
        e('s_cmp_eq_u32 s%d, 3' % S_W)
        e('s_cbranch_scc1 %s_p0w3' % n)
        e('s_lshl_b32 s%d, s%d, 5' % (S_T1, S_W))
        e('s_add_u32 s%d, s%d, s%d' % (S_T1, S_T1, S_RB))
        self.task_full()
        e('s_mov_b32 s%d, 1' % S_HAS)
        e('s_branch %s_p0end' % n)
        e('%s_p0w3:' % n)
        e('s_and_b32 s%d, s%d, 1' % (S_T2, S_CB))
        e('s_lshl_b32 s%d, s%d, 2' % (S_T2, S_T2))
        e('s_add_u32 s%d, s%d, s%d' % (S_T2, S_T2, S_RB))
        e('s_and_b32 s%d, s%d, 7' % (S_T3, S_T2))
        e('s_bfe_u32 s%d, s%d, 0x20003' % (S_T2, S_T2))
        e('s_mul_i32 s%d, s%d, 3' % (S_T2, S_T2))
        e('s_add_u32 s%d, s%d, s%d' % (S_SEC, S_T2, S_T3))
        e('s_add_u32 s%d, s%d, 1' % (S_SEC, S_SEC))
        e('s_cmp_lt_u32 s%d, 3' % S_T3)
        e('s_cselect_b32 s%d, 1, 0' % S_HAS)
        e('s_cselect_b32 s%d, s%d, 1' % (S_SEC, S_SEC))
        self.task_quad()
        e('%s_p0end:' % n)
        if a.flow == 'bp':
            self.x3_offsets()
        if a.flow == 'bq' and a.own:
            e('s_cmp_eq_u32 s%d, 0' % S_W)
            e('s_cbranch_scc1 %s_p0w0' % n)
            self.x_offsets()
            e('%s_p0w0:' % n)
        e('s_waitcnt lgkmcnt(0)')
        self.stamp(1)
        e('s_load_dword s%d, s[%d:%d], s%d' % (S_N, S_WS, S_WS + 1, S_NOFF))

    def x_offsets(self):
        e = self.e
        for b in range(9):
            e('v_add_u32 v%d, %d, v%d' % (T1, 64 * b, V_LANE))
            e('v_mul_u32_u24 v%d, 911, v%d' % (T2, T1))
            e('v_lshrrev_b32 v%d, 16, v%d' % (T2, T2))
            e('v_mul_u32_u24 v%d, 72, v%d' % (T3, T2))
            e('v_sub_u32 v%d, v%d, v%d' % (T1, T1, T3))
            e('v_lshrrev_b32 v%d, 1, v%d' % (T3, T2))
            e('v_xor_b32 v%d, v%d, v%d' % (T1, T1, T3))
            e('v_mul_u32_u24 v%d, 1152, v%d' % (T2, T2))
            e('v_lshl_add_u32 v%d, v%d, 4, v%d' % (V_DM9 + b, T1, T2))
        e('s_and_b32 s%d, s%d, 1' % (S_T2, S_CB))
        e('s_lshl_b32 s%d, s%d, 6' % (S_T2, S_T2))
        for b in range(9):
            e('v_xor_b32 v%d, s%d, v%d' % (V_DM9 + b, S_T2, V_DM9 + b))

    def x_warm(self):
        e = self.e
        e('s_mul_i32 s%d, s%d, %d' % (S_T0, S_RB, 64 * 1152))
        e('s_mul_i32 s%d, s%d, 9216' % (S_T1, S_CB))
        e('s_add_u32 s%d, s%d, s%d' % (S_T0, S_T0, S_T1))
        e('v_lshlrev_b32 v%d, 7, v%d' % (T1, V_LANE))
        e('v_min_u32 v%d, 7, v%d' % (T2, V_LANE))
        e('v_lshlrev_b32 v%d, 7, v%d' % (T2, T2))
        e('v_add_u32 v%d, 8192, v%d' % (T2, T2))
        e('buffer_load_dword v%d, v%d, s[%d:%d], s%d offen' % (V_DUMMY, T1, S_X, S_X + 3, S_T0))
        e('buffer_load_dword v%d, v%d, s[%d:%d], s%d offen' % (V_DUMMY, T2, S_X, S_X + 3, S_T0))

    def prologue1(self, n):
        a, e = self.a, self.e
        e('v_lshlrev_b32 v%d, 4, v%d' % (V_S, V_LANE))
        e('v_lshlrev_b32 v%d, 4, v%d' % (V_C, V_G))
        e('v_lshlrev_b32 v%d, 3, v%d' % (V_CQ, V_G))
        e('s_mul_i32 s%d, s%d, 18' % (S_T0, S_CB))
        e('s_lshl_b32 s%d, s%d, 1' % (S_T3, S_W))
        e('s_add_u32 s%d, s%d, s%d' % (S_T1, S_T0, S_T3))
        e('s_mul_i32 s%d, s%d, 12288' % (S_WB, S_T1))
        e('s_add_u32 s%d, s%d, %d' % (S_WB, S_WB, WS_DATA))
        e('s_add_u32 s%d, s%d, 16' % (S_T1, S_T0))
        e('s_mul_i32 s%d, s%d, 12288' % (S_T1, S_T1))
        e('s_add_u32 s%d, s%d, %d' % (S_T1, S_T1, WS_DATA))
        e('s_mul_i32 s%d, s%d, 6144' % (S_T2, S_W))
        e('s_add_u32 s%d, s%d, s%d' % (S_WQ, S_T1, S_T2))
        e('s_min_u32 s%d, s%d, 12288' % (S_T2, S_T2))
        e('s_add_u32 s%d, s%d, s%d' % (S_HQ, S_T1, S_T2))
        e('s_mul_i32 s%d, s%d, 1152' % (S_T1, S_CB))
        e('s_lshl_b32 s%d, s%d, 7' % (S_T3, S_W))
        e('s_add_u32 s%d, s%d, s%d' % (S_SCB, S_T1, S_T3))
        e('s_lshl_b32 s%d, s%d, 5' % (S_T2, S_W))
        e('s_add_u32 s%d, s%d, s%d' % (S_SCQ, S_T1, S_T2))
        e('s_add_u32 s%d, s%d, 1024' % (S_SCQ, S_SCQ))
        e('s_mul_i32 s%d, s%d, %d' % (S_T2, S_RB, 64 * 9216))
        e('s_add_u32 s%d, s%d, s%d' % (S_O, S_T1, S_T2))
        for sg in range(1, 4):
            e('s_add_u32 s%d, s%d, %d' % (S_O + sg, S_O, 147456 * sg))
        e('s_mul_i32 s%d, s%d, 147456' % (S_T2, S_W))
        e('s_add_u32 s%d, s%d, s%d' % (S_OQ, S_O, S_T2))
        e('s_add_u32 s%d, s%d, 1024' % (S_OQ, S_OQ))
        e('s_sub_u32 s%d, s%d, s%d' % (S_OQ, S_OQ, S_T3))
        e('s_mov_b32 s%d, 2.0' % S_SCL)
        e('s_lshl_b32 s%d, s%d, 7' % (S_T5, S_W))
        e('s_lshl_b32 s%d, s%d, 14' % (S_T1, S_W))
        e('s_add_u32 s%d, s%d, %d' % (S_T1, S_T1, LDS_ST))
        e('v_add_u32 v%d, s%d, v%d' % (V_TR, S_T1, V_S))
        e('v_and_b32 v%d, 7, v%d' % (T1, V_I))
        e('v_xor_b32 v%d, v%d, v%d' % (T2, T1, V_G))
        e('v_lshlrev_b32 v%d, 4, v%d' % (T2, T2))
        e('v_lshl_add_u32 v%d, v%d, 7, v%d' % (T2, V_I, T2))
        e('v_add_u32 v%d, s%d, v%d' % (V_TWA, S_T1, T2))
        e('v_xor_b32 v%d, 64, v%d' % (V_TWB, V_TWA))
        e('s_lshl_b32 s%d, s%d, 1' % (S_T2, S_W))
        e('v_lshrrev_b32 v%d, 1, v%d' % (T2, V_G))
        e('v_add_u32 v%d, s%d, v%d' % (T2, S_T2, T2))
        e('v_xor_b32 v%d, v%d, v%d' % (T2, T2, T1))
        e('v_lshlrev_b32 v%d, 4, v%d' % (T2, T2))
        e('v_lshl_add_u32 v%d, v%d, 7, v%d' % (T2, V_I, T2))
        e('v_and_b32 v%d, 1, v%d' % (T3, V_G))
        e('v_lshl_add_u32 v%d, v%d, 3, v%d' % (T2, T3, T2))
        e('v_add_u32 v%d, %d, v%d' % (V_TWQ, LDS_Q, T2))
        e('v_lshrrev_b32 v%d, 3, v%d' % (T1, V_LANE))
        e('v_and_b32 v%d, 7, v%d' % (T2, V_LANE))
        e('v_xor_b32 v%d, v%d, v%d' % (T2, T2, T1))
        e('v_mul_u32_u24 v%d, 9216, v%d' % (T1, T1))
        e('v_lshl_add_u32 v%d, v%d, 4, v%d' % (T1, T2, T1))
        e('v_add_u32 v%d, s%d, v%d' % (V_OOA, S_T3, T1))
        e('v_add_u32 v%d, %d, v%d' % (V_OOB, 8 * 9216, V_OOA))
        e('v_bfe_u32 v%d, v%d, 1, 3' % (T1, V_I))
        e('v_xor_b32 v%d, v%d, v%d' % (T1, T1, V_G))
        e('v_lshlrev_b32 v%d, 4, v%d' % (T1, T1))
        e('v_mul_u32_u24 v%d, 1152, v%d' % (T2, V_I))
        e('v_add_u32 v%d, v%d, v%d' % (V_XB, T1, T2))
        e('v_xor_b32 v%d, 64, v%d' % (V_XB + 1, V_XB))
        e('v_min_u32 v%d, 47, v%d' % (T1, V_LANE))
        e('v_lshrrev_b32 v%d, 2, v%d' % (T2, T1))
        e('v_and_b32 v%d, 3, v%d' % (T1, T1))
        e('v_lshlrev_b32 v%d, 8, v%d' % (T1, T1))
        e('v_lshl_add_u32 v%d, v%d, 10, v%d' % (T1, T2, T1))
        e('v_add_u32 v%d, 12, v%d' % (V_HINT, T1))
        e('s_lshl_b32 s%d, s%d, 14' % (S_T1, S_W))
        e('s_add_u32 s%d, s%d, %d' % (S_T1, S_T1, LDS_ST + 8192))
        e('v_bfe_u32 v%d, v%d, 1, 2' % (T1, V_I))
        e('v_xor_b32 v%d, v%d, v%d' % (T1, T1, V_G))
        e('v_lshl_add_u32 v%d, v%d, 2, v%d' % (T1, V_I, T1))
        e('v_lshlrev_b32 v%d, 4, v%d' % (T1, T1))
        if a.split == 2:
            e('v_mul_u32_u24 v%d, 9216, v%d' % (T1, V_I))
            e('v_add_u32 v%d, v%d, v%d' % (T1, T1, V_C))
            e('v_add_u32 v%d, s%d, v%d' % (V_TW6, S_T5, T1))
        else:
            e('v_add_u32 v%d, s%d, v%d' % (V_TW6, S_T1, T1))
        e('v_lshrrev_b32 v%d, 2, v%d' % (T1, V_LANE))
        e('v_mul_u32_u24 v%d, 9216, v%d' % (T1, T1))
        e('v_bfe_u32 v%d, v%d, 3, 2' % (T2, V_LANE))
        e('v_and_b32 v%d, 3, v%d' % (T3, V_LANE))
        e('v_xor_b32 v%d, v%d, v%d' % (T2, T2, T3))
        e('v_lshl_add_u32 v%d, v%d, 4, v%d' % (T1, T2, T1))
        e('v_add_u32 v%d, s%d, v%d' % (V_OO6, S_T5, T1))
        e('s_lshl_b32 s%d, s%d, 6' % (S_T2, S_W))
        e('v_add_u32 v%d, s%d, v%d' % (T1, S_T2, V_LANE))
        e('v_cmp_eq_u32 vcc, 0, v%d' % T1)
        e('v_mov_b32 v%d, s%d' % (T2, S_NOFF))
        e('v_mov_b32 v%d, 2' % V_NBV)
        e('v_mov_b32 v%d, 0x7ffffff0' % V_NBO)
        e('v_cndmask_b32 v%d, v%d, v%d, vcc' % (V_NBO, V_NBO, T2))

    def code_prefetch(self, n):
        a, e = self.a, self.e
        if a.pf:
            e('s_getpc_b64 s[%d:%d]' % (S_CODE, S_CODE + 1))
            lbl = '%s_pc%d' % (n, len(self.L))
            e('%s:' % lbl)
            e('s_mov_b32 s%d, %s_end-%s' % (S_CODE + 2, n, lbl))
            e('s_mov_b32 s%d, 0x00020000' % (S_CODE + 3))
            e('s_lshr_b32 s%d, s2, 3' % S_T0)
            e('s_lshl_b32 s%d, s%d, 10' % (S_T0, S_T0))
            e('v_and_b32 v%d, 7, v%d' % (T1, V_LANE))
            e('v_lshlrev_b32 v%d, 7, v%d' % (T1, T1))
            self.vmem('buffer_load_dword v%d, v%d, s[%d:%d], s%d offen' % (V_DUMMY, T1, S_CODE, S_CODE + 3, S_T0), 'pf')
        if a.warm:
            e('s_mul_i32 s%d, s%d, 1152' % (S_T0, S_CB))
            e('v_min_u32 v%d, 8, v%d' % (T1, V_LANE))
            e('v_lshlrev_b32 v%d, 7, v%d' % (T1, T1))
            self.vmem('buffer_load_dword v%d, v%d, s[%d:%d], s%d offen' % (V_DUMMY, T1, S_SC, S_SC + 3, S_T0), 'pf')

    def qreg(self, ks, el, deferred):
        i = 8 * ks + el
        if not deferred:
            return V_UQ + 2 * i
        return 164 + 2 * i if i < 16 else 224 + 2 * (i - 16)

    def unit_loads(self, deferred=False):
        a, e = self.a, self.e
        nt = ' nt' if a.qnt else ''
        self.vmem('buffer_load_dword v%d, v%d, s[%d:%d], s%d offen' % (216 if deferred else V_UZ, V_PZ, S_ZP, S_ZP + 3, S_ZS), 'z')
        for ks in range(3):
            if ks:
                e('s_add_u32 s%d, s%d, %d' % (S_U, S_U, 18432 * 32))
            for el in range(8):
                r = self.qreg(ks, el, deferred)
                self.vmem('buffer_load_dwordx2 v[%d:%d], v%d, s[%d:%d], s%d offen%s' % (
                    r, r + 1, V_PQ if el == 0 else V_PR + el - 1, S_QW, S_QW + 3, S_U, nt), 'unit')

    def x_dma(self, n, j0=0, j1=2):
        a, e = self.a, self.e
        nt = ' nt' if a.xnt else ''
        e('s_mul_i32 s%d, s%d, %d' % (S_T0, S_RB, 64 * 1152))
        e('s_lshl_b32 s%d, s%d, 1' % (S_T2, S_W))
        e('s_add_u32 s%d, s%d, s%d' % (S_T2, S_T2, S_CB))
        for j in range(j0, j1):
            e('s_add_u32 s%d, s%d, %d' % (S_T3, S_T2, j))
            e('s_and_b32 s%d, s%d, 7' % (S_T3, S_T3))
            e('s_mul_i32 s%d, s%d, 9216' % (S_T4, S_T3))
            e('s_add_u32 s%d, s%d, s%d' % (S_L0, S_T4, S_T0))
            for b in range(9):
                e('s_add_u32 m0, s%d, %d' % (S_T4, b * 1024))
                e('s_nop 0')
                self.vmem('buffer_load_dwordx4 v%d, s[%d:%d], s%d offen%s lds' % (V_DM9 + b, S_X, S_X + 3, S_L0, nt), 'xdma')
            if j == 0:
                for b in range(9):
                    e('v_xor_b32 v%d, 64, v%d' % (V_DM9 + b, V_DM9 + b))

    def x3_offsets(self):
        e = self.e
        e('s_sub_u32 s%d, s%d, 1' % (S_T1, S_W))
        e('s_mul_i32 s%d, s%d, 192' % (S_T1, S_T1))
        for i in range(3):
            e('v_add_u32 v%d, s%d, v%d' % (T1, S_T1, V_LANE))
            if i:
                e('v_add_u32 v%d, %d, v%d' % (T1, 64 * i, T1))
            e('v_mul_u32_u24 v%d, 911, v%d' % (T2, T1))
            e('v_lshrrev_b32 v%d, 16, v%d' % (T2, T2))
            e('v_mul_u32_u24 v%d, 72, v%d' % (T3, T2))
            e('v_sub_u32 v%d, v%d, v%d' % (T1, T1, T3))
            e('v_lshrrev_b32 v%d, 1, v%d' % (T3, T2))
            e('v_xor_b32 v%d, v%d, v%d' % (T1, T1, T3))
            e('v_mul_u32_u24 v%d, 1152, v%d' % (T2, T2))
            e('v_lshl_add_u32 v%d, v%d, 4, v%d' % (V_DM9 + i, T1, T2))
        e('s_sub_u32 s%d, s%d, 1' % (S_UU, S_W))
        e('s_mul_i32 s%d, s%d, 3072' % (S_UU, S_UU))

    def x3_dma(self, n, j0, j1):
        a, e = self.a, self.e
        nt = ' nt' if a.xnt else ''
        e('s_mul_i32 s%d, s%d, %d' % (S_T0, S_RB, 64 * 1152))
        e('s_mov_b32 s%d, %d' % (S_T2, j0))
        lbl = '%s_xloop%d' % (n, j0)
        e('%s:' % lbl)
        e('s_add_u32 s%d, s%d, s%d' % (S_T3, S_CB, S_T2))
        e('s_and_b32 s%d, s%d, 7' % (S_T3, S_T3))
        e('s_mul_i32 s%d, s%d, 9216' % (S_T4, S_T3))
        e('s_and_b32 s%d, s%d, 1' % (S_T3, S_T3))
        e('s_lshl_b32 s%d, s%d, 6' % (S_T3, S_T3))
        for i in range(3):
            e('v_xor_b32 v%d, s%d, v%d' % (V_DM9 + 3 + i, S_T3, V_DM9 + i))
        e('s_add_u32 s%d, s%d, s%d' % (S_L0, S_T4, S_T0))
        e('s_add_u32 s%d, s%d, s%d' % (S_L0 + 1, S_T4, S_UU))
        for i in range(3):
            e('s_add_u32 m0, s%d, %d' % (S_L0 + 1, i * 1024))
            e('s_nop 0')
            e('buffer_load_dwordx4 v%d, s[%d:%d], s%d offen%s lds' % (V_DM9 + 3 + i, S_X, S_X + 3, S_L0, nt))
        if j1 - j0 > 1:
            e('s_add_u32 s%d, s%d, 1' % (S_T2, S_T2))
            e('s_cmp_lt_u32 s%d, %d' % (S_T2, j1))
            e('s_cbranch_scc1 %s' % lbl)
        self.vm += ['xdma'] * (3 * (j1 - j0))

    def pack_publish(self, lbl, deferred=False):
        a, e = self.a, self.e
        if deferred:
            UZ, A, B, C, D, ACC, F, G = 216, 219, 220, 221, 222, 223, 3, 255
            R = (164, 168)
            PS, PS2 = 217, 218
        else:
            UZ, A, B, C, D, ACC, F, G = V_UZ, 133, 134, 135, 136, 137, 138, 139
            R = (V_UR, V_UR + 4)
            PS, PS2 = V_PS, V_PS2
        e('v_lshlrev_b32 v%d, 16, v%d' % (A, UZ))
        e('v_and_b32 v%d, 0xffff0000, v%d' % (B, UZ))
        e('v_cvt_u32_f32 v%d, v%d' % (C, A))
        e('v_cvt_u32_f32 v%d, v%d' % (D, B))
        e('v_cvt_f32_u32 v%d, v%d' % (F, C))
        e('v_cvt_f32_u32 v%d, v%d' % (G, D))
        e('v_or_b32 v%d, v%d, v%d' % (ACC, C, D))
        e('v_cmp_neq_f32 s[%d:%d], v%d, v%d' % (S_T2, S_T3, F, A))
        e('v_cmp_neq_f32 vcc, v%d, v%d' % (G, B))
        e('v_sub_u32 v%d, 3, v%d' % (C, C))
        e('v_sub_u32 v%d, 3, v%d' % (D, D))
        e('s_or_b64 s[%d:%d], s[%d:%d], vcc' % (S_T2, S_T3, S_T2, S_T3))
        e('v_mov_b32 v%d, 0x00090a0b' % F)
        e('s_mov_b32 s%d, 0x00030201' % S_T0)
        e('v_alignbyte_b32 v%d, s%d, v%d, v%d' % (C, S_T0, F, C))
        e('v_alignbyte_b32 v%d, s%d, v%d, v%d' % (D, S_T0, F, D))
        q = lambda ks, el, t: self.qreg(ks, el, deferred) + t
        for ks in range(3):
            for el in range(8):
                e('v_or3_b32 v%d, v%d, v%d, v%d' % (ACC, ACC, q(ks, el, 0), q(ks, el, 1)))
        LO, HI = A, B
        for ks in range(3):
            for t in range(2):
                T = C if t == 0 else D
                e('v_lshl_or_b32 v%d, v%d, 8, v%d' % (LO, q(ks, 6, t), q(ks, 4, t)))
                e('v_lshl_or_b32 v%d, v%d, 8, v%d' % (HI, q(ks, 7, t), q(ks, 5, t)))
                e('v_lshl_or_b32 v%d, v%d, 8, v%d' % (LO, LO, q(ks, 2, t)))
                e('v_lshl_or_b32 v%d, v%d, 8, v%d' % (HI, HI, q(ks, 3, t)))
                e('v_lshl_or_b32 v%d, v%d, 8, v%d' % (LO, LO, q(ks, 0, t)))
                e('v_lshl_or_b32 v%d, v%d, 8, v%d' % (HI, HI, q(ks, 1, t)))
                e('v_perm_b32 v%d, v%d, v%d, v%d' % (LO, T, T, LO))
                e('v_perm_b32 v%d, v%d, v%d, v%d' % (HI, T, T, HI))
                e('v_lshl_or_b32 v%d, v%d, 4, v%d' % (R[t] + ks, HI, LO))
        e('v_and_b32 v%d, 0xfffffffc, v%d' % (ACC, ACC))
        e('v_cmp_ne_u32 vcc, 0, v%d' % ACC)
        e('v_mov_b32 v%d, s%d' % (R[0] + 3, S_TAG))
        e('v_mov_b32 v%d, s%d' % (R[1] + 3, S_TAG))
        e('s_or_b64 s[%d:%d], s[%d:%d], vcc' % (S_T2, S_T3, S_T2, S_T3))
        e('s_mov_b32 s%d, 0' % S_HAS)
        e('s_cmp_lg_u64 s[%d:%d], 0' % (S_T2, S_T3))
        e('s_cbranch_scc1 %s' % lbl)
        e('s_mov_b32 s%d, 1' % S_HAS)
        self.vmem('buffer_store_dwordx4 v[%d:%d], v%d, s[%d:%d], s%d offen sc1' % (R[0], R[0] + 3, PS, S_WS, S_WS + 3, S_US), 'pub')
        self.vmem('buffer_store_dwordx4 v[%d:%d], v%d, s[%d:%d], s%d offen sc1' % (R[1], R[1] + 3, PS2, S_WS, S_WS + 3, S_US), 'pub')
        e('%s:' % lbl)

    def xreg(self, s, sg):
        i = s * 4 + sg
        if s < 16:
            return 'a[%d:%d]' % (4 * i, 4 * i + 3)
        r = V_XX + 4 * (i - 64)
        return 'v[%d:%d]' % (r, r + 3)

    def x_read(self, s, sg):
        return 'ds_read_b128 %s, v%d offset:%d' % (self.xreg(s, sg), V_XB + (s & 1), sg * 18432 + (s >> 1) * 128)

    def stage_params(self, kind, st):
        if kind == 'full':
            q0 = 8 * (st >> 1) + (st & 1)
            return dict(kind=kind, st=st, wadd=q0 * 12288, wb=S_WB, scb=S_SCB, scadd=64 * q0, nt=2, nslot=12)
        return dict(kind=kind, st=st, wadd=0, wb=S_WQ, scb=S_SCQ, scadd=0, nt=1, nslot=6)

    def slot_addr(self, P):
        sb = P.get('sb', S_L0)
        return ['s_add_u32 s%d, s%d, %d' % (sb + j, P['wb'], P['wadd'] + 4096 * j) for j in range(-(-P['nslot'] // 4))]

    def slot_loads(self, P, buf):
        L = []
        for j in range(P['nslot']):
            r = V_SB[buf] + 4 * j
            off = (j % 4) * 1024
            L.append('buffer_load_dwordx4 v[%d:%d], v%d, s[%d:%d], s%d offen%s sc1' % (
                r, r + 3, V_S, S_WS, S_WS + 3, P.get('sb', S_L0) + j // 4, (' offset:%d' % off) if off else ''))
        return L

    def xads(self, P, buf):
        return ['v_xad_u32 v%d, v%d, s%d, %s' % (V_BAD, V_SB[buf] + 4 * j + 3, S_TAG, '0' if j == 0 else 'v%d' % V_BAD)
                for j in range(P['nslot'])]

    def acquire_loop(self, n, P, buf, lbl, back, fail=None):
        e = self.e
        e('%s:' % lbl)
        e('s_mov_b32 s%d, 0' % S_CNT)
        for ins in self.slot_addr(P):
            e(ins)
        entry = lbl
        lbl = lbl + '_loop'
        e('%s:' % lbl)
        if self.a.nohint:
            e('s_cmp_lt_u32 s%d, %d' % (S_CNT, self.a.nohint))
            e('s_cbranch_scc1 %s_full' % lbl)
        e('buffer_load_dword v%d, v%d, s[%d:%d], s%d offen sc1' % (V_HV, V_HINT, S_WS, S_WS + 3, P.get('sb', S_L0) if P['kind'] == 'full' else S_HQ))
        e('s_waitcnt vmcnt(0)')
        e('v_cmp_ne_u32 vcc, s%d, v%d' % (S_TAG, V_HV))
        e('s_cbranch_vccnz %s_again' % lbl)
        e('%s_full:' % lbl)
        for ins in self.slot_loads(P, buf):
            e(ins)
        e('s_waitcnt vmcnt(0)')
        for ins in self.xads(P, buf):
            e(ins)
        e('v_cmp_ne_u32 vcc, 0, v%d' % V_BAD)
        if self.a.stamps and self.a.stampset == 'E':
            k = 1 + int(back[-1]) if back[-1].isdigit() else 7
            e('s_add_u32 s%d, s%d, 1' % (S_STAMP + 2 * k, S_CNT))
        e('s_cbranch_vccz %s' % back)
        e('%s_again:' % lbl)
        e('s_add_u32 s%d, s%d, 1' % (S_CNT, S_CNT))
        e('s_cmp_lt_u32 s%d, %d' % (S_CNT, self.a.limit))
        e('s_cbranch_scc1 %s' % lbl)
        e('s_branch %s' % (fail or '%s_fallback' % n))

    def cvts(self, P, buf, s, fb):
        u, ks = s // 3, s % 3
        L = []
        for t in range(P['nt']):
            src = V_SB[buf] + 4 * (P['nt'] * u + t) + ks
            L.append(['v_cvt_scalef32_pk_bf16_fp4 v%d, v%d, s%d op_sel:[%d,%d,0]' % (V_F[fb] + 4 * t + j, src, S_SCL, j & 1, j >> 1)
                      for j in range(4)])
        return L

    def unpacks(self, P):
        L = []
        if P['kind'] == 'full':
            for r in range(4):
                L.append('v_lshlrev_b32 v%d, 16, v%d' % (V_SU + r, V_SR + r))
                L.append('v_and_b32 v%d, 0xffff0000, v%d' % (V_SU + 4 + r, V_SR + r))
        else:
            for r in range(2):
                L.append('v_lshlrev_b32 v%d, 16, v%d' % (V_SU + 2 * r, V_SR + r))
                L.append('v_and_b32 v%d, 0xffff0000, v%d' % (V_SU + 2 * r + 1, V_SR + r))
        return L

    def scale_load(self, P):
        if P['kind'] == 'full':
            return ['s_add_u32 s%d, s%d, %d' % (S_T0, P['scb'], P['scadd']),
                    'buffer_load_dwordx4 v[%d:%d], v%d, s[%d:%d], s%d offen' % (V_SR, V_SR + 3, V_C, S_SC, S_SC + 3, S_T0)]
        return ['s_mov_b32 s%d, s%d' % (S_T0, P['scb']),
                'buffer_load_dwordx2 v[%d:%d], v%d, s[%d:%d], s%d offen' % (V_SR, V_SR + 1, V_CQ, S_SC, S_SC + 3, S_T0)]

    def epi_w(self, P, acset, sg):
        L = []
        a0 = V_AC[acset] + 4 * sg
        a1 = V_AC[acset] + 16 + 4 * sg
        o = V_O[sg & 1]
        for r in range(4):
            L.append(('v_mul_f32 v%d, v%d, v%d' % (a0 + r, a0 + r, V_SU + r), 1))
            L.append(('v_mul_f32 v%d, v%d, v%d' % (a1 + r, a1 + r, V_SU + 4 + r), 1))
        for r in range(4):
            L.append(('v_cvt_pk_bf16_f32 v%d, v%d, v%d' % (o + r, a0 + r, a1 + r), 1))
        st = P['st']
        if self.a.split == 2 and st >= 2:
            L.append(('buffer_store_dwordx4 v[%d:%d], v%d, s[%d:%d], s%d offen offset:%d%s' % (
                o, o + 3, V_TW6, S_OUT, S_OUT + 3, S_O + sg, 512 + 64 * (st & 1), self.a.oflags), 2))
        elif self.a.split and st >= 2:
            L.append(('ds_write_b128 v%d, v[%d:%d] offset:%d' % (V_TW6, o, o + 3, (st & 1) * 4096 + sg * 1024), 2))
        else:
            L.append(('ds_write_b128 v%d, v[%d:%d] offset:%d' % (V_TWB if st & 1 else V_TWA, o, o + 3, (st >> 1) * 8192 + sg * 2048), 2))
        return L

    def epi_r(self, P, sg, hh, k):
        o2 = V_O2[k & 1]
        if self.a.split and P['st'] >= 2:
            st = P['st']
            rd = 'ds_read_b128 v[%d:%d], v%d offset:%d' % (o2, o2 + 3, V_TR, 8192 + (st & 1) * 4096 + sg * 1024)
            stt = 'buffer_store_dwordx4 v[%d:%d], v%d, s[%d:%d], s%d offen offset:%d%s' % (
                o2, o2 + 3, V_OO6, S_OUT, S_OUT + 3, S_O + sg, 512 + 64 * (st & 1), self.a.oflags)
            return rd, stt
        jj = P['st'] >> 1
        rd = 'ds_read_b128 v[%d:%d], v%d offset:%d' % (o2, o2 + 3, V_TR, jj * 8192 + sg * 2048 + hh * 1024)
        imm = (' offset:%d' % (512 * jj)) if jj else ''
        stt = 'buffer_store_dwordx4 v[%d:%d], v%d, s[%d:%d], s%d offen%s%s' % (
            o2, o2 + 3, V_OOB if hh else V_OOA, S_OUT, S_OUT + 3, S_O + sg, imm, self.a.oflags)
        return rd, stt

    def main_loop(self, n, stages):
        a = self.a
        M = []
        start = []
        for si, (kind, st) in enumerate(stages):
            P = self.stage_params(kind, st)
            start.append(len(M))
            for s in range(18):
                if a.morder == 'sig' and P['nt'] == 2:
                    order = [(t, sg) for sg in range(4) for t in range(2)]
                else:
                    order = [(t, sg) for t in range(P['nt']) for sg in range(4)]
                for t, sg in order:
                    ac = V_AC[si & 1] + 16 * t + 4 * sg
                    f = V_F[s & 1] + 4 * t
                    c = '0' if s == 0 else 'v[%d:%d]' % (ac, ac + 3)
                    M.append(('v_mfma_f32_16x16x32_bf16 v[%d:%d], v[%d:%d], %s, %s' % (ac, ac + 3, f, f + 3, self.xreg(s, sg), c), si, s, t, sg))
        start.append(len(M))
        first_use, last_use, last_wr = {}, {}, {}
        for i, (_, si, s, t, sg) in enumerate(M):
            first_use.setdefault((si, s, t), i)
            last_use[(si, s, t)] = i
            last_wr[(si, t, sg)] = i
        items, hard = [], []

        def add(text, cost, rel, dl, tag=None, pred=None, kind=None):
            it = Item(text, cost, rel, dl, tag, pred, kind)
            items.append(it)
            return it
        branch_of = {}
        last_mul = None
        stores, reads = [], []
        for si, (kind, st) in enumerate(stages):
            P = self.stage_params(kind, st)
            g0, g1 = start[si], start[si + 1]
            ng = g1 - g0
            per = ng // 18
            nxt = self.stage_params(*stages[si + 1]) if si + 1 < len(stages) else None
            prv = self.stage_params(*stages[si - 1]) if si > 0 else None
            buf = si & 1
            lastld = None
            ld0 = g0 + (per * a.ld0 if si == 0 else 0)
            span = int(ng * (a.ldspan0 if si == 0 else a.ldspan))
            if nxt:
                p = None
                for ins in self.slot_addr(nxt):
                    p = add(ins, 1, max(g0, ld0 - 4), max(g0, ld0 - 4) + 3, pred=p)
                ll = self.slot_loads(nxt, buf ^ 1)
                for j, ins in enumerate(ll):
                    p = add(ins, 2, ld0 + 1, ld0 + 4 + (j + 1) * span // len(ll), tag='slot', pred=p)
                lastld = p
            else:
                add('buffer_atomic_add v%d, v%d, s[%d:%d], 0 offen sc1' % (V_NBV, V_NBO, S_WS, S_WS + 3), 2, g0 + 2, g0 + 10, tag='nb')
            p = None
            if prv:
                for j, ins in enumerate(self.unpacks(prv)):
                    p = add(ins, 1, g0, g0 + 12, pred=[p, last_mul] if j == 0 else p)
            unp = p
            sl = self.scale_load(P)
            p = add(sl[0], 1, ld0 + 2, ld0 + span + 6, pred=unp)
            scl = add(sl[1], 2, ld0 + 2, ld0 + span + 10, tag='scale', pred=[p, lastld])
            if prv:
                w0, w1 = g0 + 6, g0 + int(ng * a.epiend)
                dswr = []
                for sg in range(4):
                    rel = max(last_wr[(si - 1, 0, sg)], last_wr[(si - 1, 1, sg)]) + 5
                    L = self.epi_w(prv, (si - 1) & 1, sg)
                    lo = w0 + (w1 - w0) * sg // 4
                    hi = w0 + (w1 - w0) * (sg + 1) // 4
                    p = unp
                    for j, (ins, cost) in enumerate(L):
                        dl = lo + (hi - lo) * (j + 1) // len(L)
                        pr = [p]
                        if j == 0 and sg > 0:
                            pr.append(last_mul)
                        if j == 8 and sg >= 2:
                            pr.append((dswr[sg - 2], 1))
                        if ins.startswith('buffer_store'):
                            pr.append(scl)
                            p = add(ins, cost, max(rel, scl.dl), max(dl, rel, scl.dl), pred=pr, tag='out')
                        else:
                            p = add(ins, cost, rel, max(dl, rel), pred=pr, kind='ds' if ins.startswith('ds_') else None)
                        if ins.startswith('v_mul'):
                            lm = p
                    dswr.append(p)
                    last_mul = lm
                half = a.split and prv['st'] >= 2
                if ((prv['st'] & 1) or half) and not (half and a.split == 2):
                    gend = start[si + 2] if (a.spread and si + 1 < len(stages) and not half) else g1
                    r0 = max(scl.dl, w0 + (w1 - w0) // 4)
                    nk = 4 if half else 8
                    for k in range(nk):
                        sg, hh = (k, 0) if half else (k >> 1, k & 1)
                        rd, stt = self.epi_r(prv, sg, hh, len(reads))
                        dl = r0 + (gend - 8 - r0) * (k + 1) // nk
                        pr = [dswr[sg]]
                        if len(stores) >= 2:
                            pr.append((stores[-2], 1))
                        if reads:
                            pr.append(reads[-1])
                        p1 = add(rd, 2, g0, max(dl - a.lgkmd - 2, g0), pred=pr, kind='ds')
                        reads.append(p1)
                        p2 = add('LGKM', 1, g0, max(dl - 1, g0), pred=[(p1, a.lgkmd)], kind='lgkm', tag=p1)
                        pr = [p2, scl]
                        if stores:
                            pr.append(stores[-1])
                        stores.append(add(stt, 2, scl.dl, max(dl, scl.dl), tag='out', pred=pr))
            gw = g0 + per * (a.wait0 if si == 0 else a.waitk)
            if nxt:
                p = add('WAIT', 1, gw, gw + 2, tag=('slot', 'scale'), kind='wait')
                for j, ins in enumerate(self.xads(nxt, buf ^ 1)):
                    p = add(ins, 1, gw, min(gw + 3 + j * per // 4, g0 + per * 17 - 5), pred=p)
                p = add('v_cmp_ne_u32 vcc, 0, v%d' % V_BAD, 1, gw, g0 + per * 17 - 3, pred=p)
                p = add('BRANCH', 1, gw, g0 + per * 17 - 1, pred=[(p, 1)], kind='branch', tag=(si + 1, nxt, buf ^ 1))
                branch_of[si + 1] = p
            else:
                p = add('WAIT', 1, gw, gw + 2, tag=('scale',), kind='wait')
                for j, ins in enumerate(self.unpacks(P)):
                    p = add(ins, 1, gw, gw + 4 + j * 2, pred=[p, last_mul] if j == 0 else p)
        brB = None
        if a.twophase:
            PF = dict(self.stage_params(*stages[0]), sb=8)
            n0 = a.twophase
            p = None
            for ins in self.slot_addr(PF):
                p = add(ins, 1, 0, 0, pred=p)
            for j, ins in enumerate(self.slot_loads(PF, 0)):
                if j >= n0:
                    p = add(ins, 2, 0, 1 + (j - n0), tag='slotB', pred=p)
            kB = 3 * (n0 // 2)
            gB = first_use[(0, kB - 1, 0)] - 8 * 2
            p = add('WAIT', 1, gB, gB + 1, tag=('slotB',), kind='wait', pred=p)
            for j in range(n0, 12):
                p = add('v_xad_u32 v%d, v%d, s%d, %s' % (V_BAD, V_SB[0] + 4 * j + 3, S_TAG, '0' if j == n0 else 'v%d' % V_BAD), 1, gB, gB + 2 + (j - n0), pred=p)
            p = add('v_cmp_ne_u32 vcc, 0, v%d' % V_BAD, 1, gB, first_use[(0, kB - 1, 0)] - 3, pred=p)
            brB = add('BRANCH', 1, gB, first_use[(0, kB - 1, 0)] - 1, pred=[(p, 1)], kind='branch', tag=(9, PF, 0))
        p = None
        for sx in range(a.xpre, 18):
            fu = first_use[(0, sx, 0)]
            for sg in range(4):
                p = add(self.x_read(sx, sg), 2, 0, max(0, fu - 8 * a.xahead + 2 * sg), pred=p, kind='ds')
            hard.append((add('LGKM', 1, max(0, fu - 3), fu - 2, pred=p, kind='lgkm', tag=p), fu - 1))
        for si, (kind, st) in enumerate(stages):
            P = self.stage_params(kind, st)
            buf = si & 1
            for s in range(18):
                if si == 0 and s == 0:
                    continue
                C = self.cvts(P, buf, s, s & 1)
                for t in range(P['nt']):
                    if s >= 2:
                        rel = last_use[(si, s - 2, t)]
                    else:
                        rel = last_use[(si - 1, 16 + s, t)] if si > 0 else 0
                    dl = first_use[(si, s, t)] - 3
                    p = branch_of[si] if (s < 2 and si > 0) else None
                    if si == 0 and brB is not None and s >= 3 * (a.twophase // 2):
                        p = brB
                    for j, ins in enumerate(C[t]):
                        p = add(ins, 1, rel, dl - (3 - j) // 2, pred=p, kind='cvt')
                        hard.append((p, first_use[(si, s, t)] - 1))
        self.lg = []
        overflow = 0
        pending = items
        for g, (mtext, si, s, t, sg) in enumerate(M):
            self.e(mtext)
            cap = 2
            while True:
                cand = [it for it in pending if not it.done and it.rel <= g and
                        all(p.done and p.gap + af <= g for p, af in it.pred)]
                if not cand:
                    break
                cand.sort(key=lambda it: it.dl)
                pick = None
                for it in cand:
                    if it.cost <= cap:
                        pick = it
                        break
                if pick is None:
                    forced = [it for it in cand if it.dl <= g]
                    if not forced:
                        break
                    pick = forced[0]
                    overflow += pick.cost
                self.emit_item(n, pick)
                pick.done = True
                pick.gap = g
                cap = max(0, cap - pick.cost)
            pending = [it for it in pending if not it.done]
            if a.defer and g + 1 == start[1]:
                self.e('s_cmp_eq_u32 s%d, 0' % S_DEF)
                self.e('s_cbranch_scc1 %s_defdone' % n)
                save = list(self.vm)
                self.pack_publish('%s_defdone' % n, deferred=True)
                self.vm = save
                self.e('s_nop 1')
            if g + 1 in start[1:]:
                self.stamp(2 + start.index(g + 1) - 1, 'B')
        while pending:
            cand = [it for it in pending if all(p.done for p, af in it.pred)]
            cand.sort(key=lambda it: it.dl)
            it = cand[0]
            assert it.kind not in ('cvt', 'branch'), it.text
            self.emit_item(n, it)
            it.done = True
            it.gap = len(M)
            pending = [x for x in pending if not x.done]
        for it, h in hard:
            assert it.gap <= h, (it.text, it.gap, h)
        self.overflow = overflow

    def emit_item(self, n, it):
        if it.kind == 'wait':
            self.e(self.wait_vm(*it.tag))
        elif it.kind == 'ds':
            self.e(it.text)
            self.lg.append(it)
        elif it.kind == 'lgkm':
            idx = self.lg.index(it.tag)
            self.e('s_waitcnt lgkmcnt(%d)' % min(15, len(self.lg) - 1 - idx) if self.a.cntlg else 's_waitcnt lgkmcnt(0)')
        elif it.kind == 'branch':
            tag, P, buf = it.tag
            self.e('s_cbranch_vccnz %s_retry%d' % (n, tag))
            self.e('%s_back%d:' % (n, tag))
            self.retry.append((tag, P, buf))
        elif it.tag in ('slot', 'slotB', 'scale', 'out', 'nb'):
            self.vmem(it.text, it.tag)
        else:
            self.e(it.text)

    def quad_tail(self, n, acs):
        a, e = self.a, self.e
        if a.qdirect:
            e('v_and_b32 v%d, 15, v%d' % (V_TR, V_LANE))
            e('v_mul_u32_u24 v%d, 9216, v%d' % (V_TR, V_TR))
            e('v_add_u32 v%d, v%d, v%d' % (V_TR, V_TR, V_CQ))
            e('s_lshl_b32 s%d, s%d, 5' % (S_T0, S_W))
            e('s_add_u32 s%d, s%d, 1024' % (S_T0, S_T0))
            e('v_add_u32 v%d, s%d, v%d' % (V_TR, S_T0, V_TR))
            for sg in range(4):
                ac = V_AC[acs] + 4 * sg
                o = (V_O + V_O2)[sg]
                for r in range(4):
                    e('v_mul_f32 v%d, v%d, v%d' % (ac + r, ac + r, V_SU + r))
                e('v_cvt_pk_bf16_f32 v%d, v%d, v%d' % (o, ac, ac + 1))
                e('v_cvt_pk_bf16_f32 v%d, v%d, v%d' % (o + 1, ac + 2, ac + 3))
                self.vmem('buffer_store_dwordx2 v[%d:%d], v%d, s[%d:%d], s%d offen%s' % (o, o + 1, V_TR, S_OUT, S_OUT + 3, S_O + sg, a.tflags), 'out')
            return
        e('s_nop 4')
        for sg in range(4):
            ac = V_AC[acs] + 4 * sg
            o = V_O[sg & 1]
            for r in range(4):
                e('v_mul_f32 v%d, v%d, v%d' % (ac + r, ac + r, V_SU + r))
            e('v_cvt_pk_bf16_f32 v%d, v%d, v%d' % (o, ac, ac + 1))
            e('v_cvt_pk_bf16_f32 v%d, v%d, v%d' % (o + 1, ac + 2, ac + 3))
            e('ds_write_b64 v%d, v[%d:%d] offset:%d' % (V_TWQ, o, o + 1, sg * 2048))
        e('%s_qbar:' % n)
        e('s_lshl_b32 s%d, s%d, 11' % (S_T0, S_W))
        e('s_add_u32 s%d, s%d, %d' % (S_T0, S_T0, LDS_Q))
        e('v_add_u32 v%d, s%d, v%d' % (V_TR, S_T0, V_S))
        e('s_waitcnt lgkmcnt(0)')
        e('s_barrier')
        for hh in range(2):
            e('ds_read_b128 v[%d:%d], v%d offset:%d' % (V_O2[hh], V_O2[hh] + 3, V_TR, hh * 1024))
        for hh in range(2):
            e('s_waitcnt lgkmcnt(%d)' % (1 - hh))
            self.vmem('buffer_store_dwordx4 v[%d:%d], v%d, s[%d:%d], s%d offen%s' % (
                V_O2[hh], V_O2[hh] + 3, V_OOB if hh else V_OOA, S_OUT, S_OUT + 3, S_OQ, a.tflags), 'out')

    def dequant_pair(self, qa, qb, z, sc, dst, TM):
        e = self.e
        x0, x1 = TM, TM + 1
        e('v_cvt_f32_i32 v%d, v%d' % (x0, qa))
        e('v_cvt_f32_i32 v%d, v%d' % (x1, qb))
        e('v_cvt_pk_bf16_f32 v%d, v%d, v%d' % (x1, x0, x1))
        e('v_lshlrev_b32 v%d, 16, v%d' % (x0, x1))
        e('v_and_b32 v%d, 0xffff0000, v%d' % (x1, x1))
        e('v_sub_f32 v%d, v%d, v%d' % (x0, x0, z))
        e('v_sub_f32 v%d, v%d, v%d' % (x1, x1, z))
        e('v_cvt_pk_bf16_f32 v%d, v%d, v%d' % (x1, x0, x1))
        e('v_lshlrev_b32 v%d, 16, v%d' % (x0, x1))
        e('v_and_b32 v%d, 0xffff0000, v%d' % (x1, x1))
        e('v_mul_f32 v%d, v%d, v%d' % (x0, x0, sc))
        e('v_mul_f32 v%d, v%d, v%d' % (x1, x1, sc))
        e('v_cvt_pk_bf16_f32 v%d, v%d, v%d' % (dst, x0, x1))

    def fallback(self, n):
        a, e = self.a, self.e
        e('%s_fallback:' % n)
        e('s_waitcnt vmcnt(0) lgkmcnt(0)')
        S_J, S_K, S_COL = S_L0, S_L0 + 1, S_L0 + 2
        A = V_AC[0]
        QV, FA, XF, ZS, TM = 36, 52, 60, 76, 80
        VO, VQ, VZ, V_I, V_G = 84, 85, 86, 87, 88
        e('v_and_b32 v%d, 15, v%d' % (V_I, V_LANE))
        e('v_lshrrev_b32 v%d, 4, v%d' % (V_G, V_LANE))
        self.vmem('buffer_atomic_add v%d, v%d, s[%d:%d], 0 offen sc1' % (V_NBV, V_NBO, S_WS, S_WS + 3), 'nb')
        e('v_mul_u32_u24 v%d, 9216, v%d' % (VO, V_I))
        e('v_add_u32 v%d, v%d, v%d' % (VO, VO, V_C))
        e('s_mov_b32 s%d, 0' % S_J)
        e('%s_fb_job:' % n)
        e('s_lshr_b32 s%d, s%d, 1' % (S_T0, S_J))
        e('s_lshl_b32 s%d, s%d, 3' % (S_T0, S_T0))
        e('s_and_b32 s%d, s%d, 1' % (S_T1, S_J))
        e('s_add_u32 s%d, s%d, s%d' % (S_T0, S_T0, S_T1))
        e('s_lshl_b32 s%d, s%d, 1' % (S_T1, S_W))
        e('s_add_u32 s%d, s%d, s%d' % (S_P, S_T0, S_T1))
        e('s_lshl_b32 s%d, s%d, 5' % (S_T0, S_P))
        e('s_lshl_b32 s%d, s%d, 4' % (S_T1, S_W))
        e('s_add_u32 s%d, s%d, 512' % (S_T1, S_T1))
        e('s_cmp_lt_u32 s%d, 4' % S_J)
        e('s_cselect_b32 s%d, s%d, s%d' % (S_T0, S_T0, S_T1))
        e('s_cselect_b32 s%d, 3, 2' % S_T2)
        e('s_mul_i32 s%d, s%d, 576' % (S_COL, S_CB))
        e('s_add_u32 s%d, s%d, s%d' % (S_COL, S_COL, S_T0))
        e('v_lshlrev_b32 v%d, s%d, v%d' % (VQ, S_T2, V_I))
        e('v_lshrrev_b32 v%d, 1, v%d' % (VZ, VQ))
        e('v_mul_u32_u24 v%d, 147456, v%d' % (TM, V_G))
        e('v_add_u32 v%d, v%d, v%d' % (VQ, VQ, TM))
        e('s_lshl_b32 s%d, s%d, 1' % (S_T0, S_COL))
        e('s_cmp_lt_u32 s%d, 4' % S_J)
        e('s_cbranch_scc0 %s_fb_zq' % n)
        e('buffer_load_dword v%d, v%d, s[%d:%d], s%d offen' % (TM, VZ, S_ZP, S_ZP + 3, S_T0))
        e('buffer_load_dword v%d, v%d, s[%d:%d], s%d offen' % (TM + 1, VZ, S_SC, S_SC + 3, S_T0))
        e('s_branch %s_fb_zok' % n)
        e('%s_fb_zq:' % n)
        e('buffer_load_ushort v%d, v%d, s[%d:%d], s%d offen' % (TM, VZ, S_ZP, S_ZP + 3, S_T0))
        e('buffer_load_ushort v%d, v%d, s[%d:%d], s%d offen' % (TM + 1, VZ, S_SC, S_SC + 3, S_T0))
        e('%s_fb_zok:' % n)
        for r in range(32):
            e('v_mov_b32 v%d, 0' % (A + r))
        e('s_waitcnt vmcnt(0)')
        e('v_lshlrev_b32 v%d, 16, v%d' % (ZS, TM))
        e('v_and_b32 v%d, 0xffff0000, v%d' % (ZS + 1, TM))
        e('v_lshlrev_b32 v%d, 16, v%d' % (ZS + 2, TM + 1))
        e('v_and_b32 v%d, 0xffff0000, v%d' % (ZS + 3, TM + 1))
        e('s_lshl_b32 s%d, s%d, 2' % (S_U, S_COL))
        e('s_mov_b32 s%d, 0' % S_K)
        e('%s_fb_k:' % n)
        for el in range(8):
            e('buffer_load_dwordx2 v[%d:%d], v%d, s[%d:%d], s%d offen' % (QV + 2 * el, QV + 2 * el + 1, VQ, S_QW, S_QW + 3, S_U))
            e('s_add_u32 s%d, s%d, %d' % (S_U, S_U, 18432 if el < 7 else 18432 * 25))
        e('s_lshr_b32 s%d, s%d, 1' % (S_T0, S_K))
        e('s_lshl_b32 s%d, s%d, 7' % (S_T0, S_T0))
        e('s_and_b32 s%d, s%d, 1' % (S_T1, S_K))
        e('s_lshl_b32 s%d, s%d, 6' % (S_T1, S_T1))
        e('v_add_u32 v%d, s%d, v%d' % (TM, S_T0, V_XB))
        e('v_xor_b32 v%d, s%d, v%d' % (TM, S_T1, TM))
        for sg in range(4):
            e('ds_read_b128 v[%d:%d], v%d offset:%d' % (XF + 4 * sg, XF + 4 * sg + 3, TM, sg * 18432))
        e('s_waitcnt vmcnt(0)')
        for t in range(2):
            for h in range(4):
                self.dequant_pair(QV + 2 * (2 * h) + t, QV + 2 * (2 * h + 1) + t, ZS + t, ZS + 2 + t, FA + 4 * t + h, TM + 2)
        e('s_waitcnt lgkmcnt(0)')
        e('s_nop 1')
        for t in range(2):
            for sg in range(4):
                ac = A + 16 * t + 4 * sg
                e('v_mfma_f32_16x16x32_bf16 v[%d:%d], v[%d:%d], v[%d:%d], v[%d:%d]' % (
                    ac, ac + 3, FA + 4 * t, FA + 4 * t + 3, XF + 4 * sg, XF + 4 * sg + 3, ac, ac + 3))
        e('s_add_u32 s%d, s%d, 1' % (S_K, S_K))
        e('s_cmp_lt_u32 s%d, 18' % S_K)
        e('s_cbranch_scc1 %s_fb_k' % n)
        e('s_nop 7')
        e('s_nop 1')
        e('s_cmp_lt_u32 s%d, 4' % S_J)
        e('s_cbranch_scc0 %s_fb_quad' % n)
        e('s_lshl_b32 s%d, s%d, 6' % (S_T0, S_P))
        for sg in range(4):
            o = V_O[sg & 1]
            for r in range(4):
                e('v_cvt_pk_bf16_f32 v%d, v%d, v%d' % (o + r, A + 4 * sg + r, A + 16 + 4 * sg + r))
            e('s_add_u32 s%d, s%d, s%d' % (S_T1, S_O + sg, S_T0))
            e('buffer_store_dwordx4 v[%d:%d], v%d, s[%d:%d], s%d offen' % (o, o + 3, VO, S_OUT, S_OUT + 3, S_T1))
        e('s_waitcnt vmcnt(0)')
        e('s_add_u32 s%d, s%d, 1' % (S_J, S_J))
        e('s_branch %s_fb_job' % n)
        e('%s_fb_quad:' % n)
        if a.qdirect:
            e('v_mul_u32_u24 v%d, 9216, v%d' % (VO, V_I))
            e('v_add_u32 v%d, v%d, v%d' % (VO, VO, V_CQ))
            e('s_lshl_b32 s%d, s%d, 5' % (S_T0, S_W))
            e('s_add_u32 s%d, s%d, 1024' % (S_T0, S_T0))
            e('v_add_u32 v%d, s%d, v%d' % (VO, S_T0, VO))
            for sg in range(4):
                o = (V_O + V_O2)[sg]
                e('v_cvt_pk_bf16_f32 v%d, v%d, v%d' % (o, A + 4 * sg, A + 4 * sg + 1))
                e('v_cvt_pk_bf16_f32 v%d, v%d, v%d' % (o + 1, A + 4 * sg + 2, A + 4 * sg + 3))
                e('buffer_store_dwordx2 v[%d:%d], v%d, s[%d:%d], s%d offen' % (o, o + 1, VO, S_OUT, S_OUT + 3, S_O + sg))
            e('s_endpgm')
            return
        for sg in range(4):
            o = V_O[sg & 1]
            e('v_cvt_pk_bf16_f32 v%d, v%d, v%d' % (o, A + 4 * sg, A + 4 * sg + 1))
            e('v_cvt_pk_bf16_f32 v%d, v%d, v%d' % (o + 1, A + 4 * sg + 2, A + 4 * sg + 3))
            e('ds_write_b64 v%d, v[%d:%d] offset:%d' % (V_TWQ, o, o + 1, sg * 2048))
        e('s_branch %s_qbar' % n)

    def write_stamps(self):
        if not self.a.stamps:
            return
        e = self.e
        e('s_waitcnt lgkmcnt(0)')
        for k in range(8):
            e('v_mov_b32 v%d, s%d' % (36 + k, S_STAMP + 2 * k))
        e('s_lshl_b32 s%d, s2, 2' % S_T0)
        e('s_add_u32 s%d, s%d, s%d' % (S_T0, S_T0, S_W))
        e('s_lshl_b32 s%d, s%d, 5' % (S_T0, S_T0))
        e('s_add_u32 s%d, s%d, %d' % (S_T0, S_T0, WS_STAMP))
        e('v_mov_b32 v1, 0')
        e('s_mov_b64 exec, 1')
        e('buffer_store_dwordx4 v[36:39], v1, s[%d:%d], s%d offen' % (S_WS, S_WS + 3, S_T0))
        e('buffer_store_dwordx4 v[40:43], v1, s[%d:%d], s%d offen offset:16' % (S_WS, S_WS + 3, S_T0))
        e('s_mov_b64 exec, -1')

    def descriptor(self, name, vg, ac):
        e = self.e
        e('.section .rodata,"a"')
        e('.p2align 6')
        e('.amdhsa_kernel %s' % name)
        e('  .amdhsa_next_free_vgpr %d' % vg)
        e('  .amdhsa_next_free_sgpr 96')
        e('  .amdhsa_accum_offset %d' % ac)
        e('  .amdhsa_group_segment_fixed_size 0')
        e('  .amdhsa_float_denorm_mode_32 3')
        e('  .amdhsa_kernarg_size 56')
        e('  .amdhsa_user_sgpr_count 2')
        e('  .amdhsa_user_sgpr_kernarg_segment_ptr 1')
        e('  .amdhsa_system_sgpr_workgroup_id_x 1')
        e('.end_amdhsa_kernel')

    def kernel(self, name):
        a, e = self.a, self.e
        e('.text')
        e('.globl %s' % name)
        e('.p2align 8')
        e('.type %s,@function' % name)
        e('%s:' % name)
        n = 'K'
        stages = [('full', i) for i in range(4)] + [('quad', 0)]
        P0 = self.stage_params(*stages[0])
        if a.twophase:
            P0 = dict(P0, nslot=a.twophase)
        self.prologue0(n)
        if a.flow == 'bq':
            e('s_cmp_ge_u32 s%d, %d' % (S_W, a.nearly))
            e('s_cbranch_scc1 %s_late' % n)
            self.vm = []
            self.unit_loads()
            self.stamp(1, 'D')
            if a.pfearly:
                self.code_prefetch(n)
            self.x_offsets()
            self.prologue1(n)
            e('s_waitcnt lgkmcnt(0)')
            self.make_tag()
            e(self.wait_vm('unit') if a.pfearly == 2 else 's_waitcnt vmcnt(0)')
            self.stamp(2, 'D')
            self.pack_publish('%s_pubE' % n)
            self.stamp(2)
            self.stamp(3, 'D')
            if not a.pfearly:
                self.code_prefetch(n)
            self.x_dma(n)
            e('s_branch %s_nopub' % n)
            e('%s_late:' % n)
            self.vm = []
            if a.defer:
                e('s_cmp_eq_u32 s%d, 3' % S_W)
                e('s_cselect_b32 s%d, s%d, 0' % (S_DEF, S_HAS))
                e('s_cselect_b32 s%d, 0, s%d' % (S_HAS, S_HAS))
            if a.own:
                self.x_dma(n, 0, 1)
            e('s_cmp_eq_u32 s%d, 0' % S_HAS)
            e('s_cbranch_scc1 %s_nounit' % n)
            self.unit_loads()
            e('%s_nounit:' % n)
            self.stamp(1, 'D')
            if not a.own:
                self.x_offsets()
            self.x_dma(n, 1 if a.own else 0, 2)
            self.prologue1(n)
            e('s_waitcnt lgkmcnt(0)')
            self.make_tag()
            e('s_cmp_eq_u32 s%d, 0' % S_HAS)
            e('s_cbranch_scc1 %s_nopub' % n)
            e(self.wait_vm('unit'))
            self.stamp(2, 'D')
            self.pack_publish('%s_pubL' % n)
            self.stamp(2)
            self.stamp(3, 'D')
            e('s_waitcnt vmcnt(2)')
            e('s_cmp_eq_u32 s%d, 1' % S_HAS)
            e('s_cbranch_scc1 %s_xin' % n)
            e('%s_nopub:' % n)
            e('s_waitcnt vmcnt(0)')
            e('%s_xin:' % n)
            self.stamp(4, 'D')
            self.vm = []
            if not a.slotsafter:
                for ins in self.slot_addr(P0):
                    e(ins)
                for ins in self.slot_loads(P0, 0):
                    self.vmem(ins, 'slot')
            if a.defer and not a.slotsafter:
                e('v_mov_b32 v217, v%d' % V_PS)
                e('v_mov_b32 v218, v%d' % V_PS2)
                e('s_cmp_eq_u32 s%d, 0' % S_DEF)
                e('s_cbranch_scc1 %s_bar' % n)
                self.unit_loads(deferred=True)
            e('%s_bar:' % n)
        elif a.flow == 'bp':
            e('s_cmp_lg_u32 s%d, 0' % S_W)
            e('s_cbranch_scc1 %s_late' % n)
            self.vm = []
            self.unit_loads()
            self.stamp(1, 'D')
            self.prologue1(n)
            e('s_waitcnt lgkmcnt(0)')
            self.make_tag()
            e('s_waitcnt vmcnt(0)')
            self.stamp(2, 'D')
            self.pack_publish('%s_pubE' % n)
            self.stamp(2)
            self.stamp(3, 'D')
            self.code_prefetch(n)
            self.acquire_loop(n, P0, 0, '%s_acqw0' % n, '%s_w0ok' % n, fail='%s_w0fail' % n)
            e('%s_w0fail:' % n)
            e('s_mov_b32 s%d, 1' % S_FB)
            e('%s_w0ok:' % n)
            e('s_mov_b32 s%d, 2' % S_HAS)
            e('s_branch %s_bar' % n)
            e('%s_late:' % n)
            self.vm = []
            if a.own:
                self.x3_dma(n, 0, a.own)
            e('s_cmp_eq_u32 s%d, 0' % S_HAS)
            e('s_cbranch_scc1 %s_nounit' % n)
            self.unit_loads()
            e('%s_nounit:' % n)
            self.stamp(1, 'D')
            self.x3_dma(n, a.own, 8)
            self.prologue1(n)
            e('s_waitcnt lgkmcnt(0)')
            self.make_tag()
            e('s_cmp_eq_u32 s%d, 0' % S_HAS)
            e('s_cbranch_scc1 %s_nopub' % n)
            e(self.wait_vm('unit'))
            self.stamp(2, 'D')
            self.pack_publish('%s_pubL' % n)
            self.stamp(2)
            self.stamp(3, 'D')
            e('s_waitcnt vmcnt(2)')
            e('s_cmp_eq_u32 s%d, 1' % S_HAS)
            e('s_cbranch_scc1 %s_xin' % n)
            e('%s_nopub:' % n)
            e('s_waitcnt vmcnt(0)')
            e('%s_xin:' % n)
            self.stamp(4, 'D')
            e('s_mov_b32 s%d, 0' % S_HAS)
            self.vm = []
            for ins in self.slot_addr(P0):
                e(ins)
            for ins in self.slot_loads(P0, 0):
                self.vmem(ins, 'slot')
            e('%s_bar:' % n)
        else:
            self.vm = []
            if a.xwarm:
                e('s_cmp_lg_u32 s%d, 3' % S_W)
                e('s_cbranch_scc1 %s_nowarm' % n)
                self.x_warm()
                e('%s_nowarm:' % n)
            e('s_cmp_eq_u32 s%d, 0' % S_HAS)
            e('s_cbranch_scc1 %s_nounit' % n)
            self.unit_loads()
            e('%s_nounit:' % n)
            self.stamp(1, 'D')
            self.x_offsets()
            self.prologue1(n)
            e('s_waitcnt lgkmcnt(0)')
            self.make_tag()
            e('s_cmp_eq_u32 s%d, 0' % S_HAS)
            e('s_cbranch_scc1 %s_pub' % n)
            e('s_waitcnt vmcnt(0)')
            self.stamp(2, 'D')
            self.pack_publish('%s_pub' % n)
            self.stamp(2)
            self.stamp(3, 'D')
            self.vm = []
            self.code_prefetch(n)
            self.x_dma(n)
            self.stamp(4, 'D')
            for ins in self.slot_addr(P0):
                e(ins)
            for ins in self.slot_loads(P0, 0):
                self.vmem(ins, 'slot')
            e(self.wait_vm('xdma'))
            e('%s_bar:' % n)
        self.stamp(5, 'D')
        e('s_barrier')
        self.stamp(3)
        self.stamp(6, 'D')
        if a.slotsafter:
            for ins in self.slot_addr(P0):
                e(ins)
            for ins in self.slot_loads(P0, 0):
                self.vmem(ins, 'slot')
            if a.defer:
                e('v_mov_b32 v217, v%d' % V_PS)
                e('v_mov_b32 v218, v%d' % V_PS2)
                e('s_cmp_eq_u32 s%d, 0' % S_DEF)
                e('s_cbranch_scc1 %s_nodef' % n)
                self.unit_loads(deferred=True)
                e('%s_nodef:' % n)
        for s in range(a.xpre):
            for sg in range(4):
                e(self.x_read(s, sg))
        if a.flow == 'bp':
            e('s_cmp_lg_u32 s%d, 0' % S_FB)
            e('s_cbranch_scc1 %s_fallback' % n)
            e('s_cmp_eq_u32 s%d, 2' % S_HAS)
            e('s_cbranch_scc1 %s_back0' % n)
        if a.defer:
            e('s_waitcnt vmcnt(25)')
            e('s_cmp_lg_u32 s%d, 0' % S_DEF)
            e('s_cbranch_scc1 %s_w25' % n)
        e('s_waitcnt vmcnt(0)')
        if a.defer:
            e('%s_w25:' % n)
        for ins in self.xads(P0, 0):
            e(ins)
        e('v_cmp_ne_u32 vcc, 0, v%d' % V_BAD)
        e('s_cbranch_vccz %s_back0' % n)
        self.stamp(4)
        self.acquire_loop(n, P0, 0, '%s_acq0' % n, '%s_back0' % n)
        e('%s_back0:' % n)
        self.stamp(5)
        self.stamp(7, 'D')
        self.stamp(1, 'B')
        C = self.cvts(P0, 0, 0, 0)
        for c in C[0] + C[1]:
            e(c)
        e('s_waitcnt lgkmcnt(0)')
        self.vm = []
        self.main_loop(n, stages)
        self.stamp(6)
        self.quad_tail(n, (len(stages) - 1) & 1)
        if a.stamps:
            e('s_waitcnt vmcnt(0)')
            self.stamp(7)
            self.stamp(7, 'B')
        self.write_stamps()
        e('%s_done:' % n)
        e('s_endpgm')
        for tag, P, buf in self.retry:
            self.acquire_loop(n, P, buf, '%s_retry%d' % (n, tag), '%s_back%d' % (n, tag))
        self.fallback(n)
        e('%s_end:' % n)
        e('s_nop 0')
        self.descriptor(name, 512, 256)

    def aux_kernels(self):
        e = self.e
        e('.text\n.globl blocker_kernel\n.p2align 8\n.type blocker_kernel,@function\nblocker_kernel:')
        e('s_cmp_ge_u32 s2, 1\ns_cbranch_scc1 B_done\ns_memrealtime s[18:19]\ns_waitcnt lgkmcnt(0)\ns_add_u32 s20, s18, 6000')
        e('B_spin:\ns_memrealtime s[18:19]\ns_waitcnt lgkmcnt(0)\ns_sub_u32 s21, s18, s20\ns_cmp_lt_i32 s21, 0\ns_cbranch_scc1 B_spin')
        e('B_done:\ns_endpgm')
        self.descriptor('blocker_kernel', 16, 16)
        e('.text\n.globl stamp_kernel\n.p2align 8\n.type stamp_kernel,@function\nstamp_kernel:')
        e('s_memrealtime s[60:61]\ns_cmp_ge_u32 s2, 1\ns_cbranch_scc1 S_done\ns_load_dwordx2 s[16:17], s[0:1], 48\ns_waitcnt lgkmcnt(0)')
        e('s_mov_b32 s40, s16\ns_mov_b32 s41, s17\ns_mov_b32 s42, %d\ns_mov_b32 s43, 0x00020000' % WS_BYTES)
        e('v_mov_b32 v4, s60\nv_mov_b32 v8, %d' % (WS_STAMP + 0x10000))
        e('v_cmp_eq_u32 vcc, 0, v0\ns_and_saveexec_b64 s[72:73], vcc\ns_cbranch_execz S_done')
        e('buffer_store_dword v4, v8, s[40:43], 0 offen')
        e('S_done:\ns_endpgm')
        self.descriptor('stamp_kernel', 16, 16)

    def build(self):
        a = self.a
        H = [
            '; Kernarg layout for this problem (56 bytes, ptrs only, base s[0:1]):',
            ';   offset   0: d_in[0] x  shape=(1, 2048, 576) dtype=bfloat16',
            ';   offset   8: d_in[1] qw  shape=(576, 4608) dtype=int32',
            ';   offset  16: d_in[2] scales  shape=(1, 4608) dtype=bfloat16',
            ';   offset  24: d_in[3] zeros  shape=(1, 4608) dtype=bfloat16',
            ';   offset  32: d_out     shape=(1, 2048, 4608) dtype=bfloat16',
            ';   offset  40: d_debug   256 bytes (unused)',
            ';   offset  48: d_ws      268435456 bytes workspace',
            ';',
            '; out = x @ ((qw - zeros) * scales), M=2048 K=576 N=4608.  Hand-designed schedule, text emitted by my own script.',
            '; One workgroup (4 waves, 512 registers each) per CU owns a 64 x 576 output tile; id -> (row block, column block).',
            ';  1. The int32 weights are read once: every wave packs a "unit" (128 columns x 24 k rows) into FP4 codes of',
            ';     q - zero (exact for 2-bit q and integral zero points, checked at run time) and writes it through to d_ws',
            ';     in 16-byte slots {3 fragment dwords, tag}.  The tag is a hash of a launch counter kept in d_ws, so a slot',
            ';     of this launch is told from whatever was there before; consumers validate the tags of everything they use.',
            ';  2. The x tile is copied to LDS (LDS-DMA, swizzled) and kept as MFMA B fragments in 288 registers per wave.',
            ';  3. Five stages per wave (4 x 32 columns, 1 x 16 columns): slots -> v_cvt_scalef32_pk_bf16_fp4 -> 16x16x32 bf16',
            ';     MFMA with fp32 sums; the next stage is prefetched and validated, the previous one is scaled, rounded,',
            ';     transposed through LDS and stored in the gaps between the MFMAs.',
            ';  4. If a slot does not become valid (values outside the 2-bit range, or a producer that is not running yet),',
            ';     the wave recomputes its columns from the int32 weights with the generic dequantisation (K_fallback).',
        ]
        if a.wrap:
            H.append('; @launch kernel=blocker_kernel grid=(1,1,1) block=(64,1,1) lds=0')
            H.append('; @launch kernel=%s grid=(256,1,1) block=(256,1,1) lds=%d' % (KN, LDS_BYTES))
            H.append('; @launch kernel=stamp_kernel grid=(1,1,1) block=(64,1,1) lds=0')
        else:
            H.append('; @launch grid=(256,1,1) block=(256,1,1) lds=%d' % LDS_BYTES)
        H.append('.amdgcn_target "amdgcn-amd-amdhsa--gfx950"')
        self.kernel(KN)
        if a.wrap:
            self.aux_kernels()
        body = []
        for l in self.L:
            for ll in l.split('\n'):
                if ll.endswith(':') or ll.startswith('.') or ll.startswith('  .'):
                    body.append(ll)
                else:
                    body.append('    ' + ll)
        return '\n'.join(H + body) + '\n'


def main():
    ap = argparse.ArgumentParser()
    ap.add_argument('-o', default='h7.s')
    ap.add_argument('--stamps', action='store_true')
    ap.add_argument('--stampset', default='A')
    ap.add_argument('--wrap', action='store_true')
    ap.add_argument('--pf', type=int, default=2)
    ap.add_argument('--warm', type=int, default=1)
    ap.add_argument('--qnt', type=int, default=1)
    ap.add_argument('--xnt', type=int, default=0)
    ap.add_argument('--oflags', default='sc1')
    ap.add_argument('--morder', default='t')
    ap.add_argument('--limit', type=int, default=4096)
    ap.add_argument('--ldspan', type=float, default=0.3)
    ap.add_argument('--epiend', type=float, default=0.78)
    ap.add_argument('--waitk', type=int, default=14)
    ap.add_argument('--spread', type=int, default=1)
    ap.add_argument('--ld0', type=int, default=3)
    ap.add_argument('--ldspan0', type=float, default=0.2)
    ap.add_argument('--wait0', type=int, default=15)
    ap.add_argument('--xpre', type=int, default=3)
    ap.add_argument('--xahead', type=int, default=3)
    ap.add_argument('--lgkmd', type=int, default=5)
    ap.add_argument('--cntlg', type=int, default=1)
    ap.add_argument('--xwarm', type=int, default=1)
    ap.add_argument('--flow', default='bp')
    ap.add_argument('--own', type=int, default=1)
    ap.add_argument('--split', type=int, default=0)
    ap.add_argument('--nearly', type=int, default=1)
    ap.add_argument('--defer', type=int, default=0)
    ap.add_argument('--nohint', type=int, default=0)
    ap.add_argument('--qdirect', type=int, default=0)
    ap.add_argument('--slotsafter', type=int, default=0)
    ap.add_argument('--twophase', type=int, default=0)
    ap.add_argument('--pfearly', type=int, default=0)
    ap.add_argument('--tflags', default='sc1')
    a = ap.parse_args()
    a.oflags = '' if a.oflags == 'none' else ' ' + a.oflags.replace('+', ' ')
    a.tflags = '' if a.tflags == 'none' else ' ' + a.tflags.replace('+', ' ')
    g = Gen(a)
    s = g.build()
    open(a.o, 'w').write(s)
    print(a.o, 'overflow slots', g.overflow)


if __name__ == '__main__':
    main()
```

```python
import argparse

KN = 'standalone__weight_only_int_quip_2__prompt_kernel'
X_BYTES, QW_BYTES, SC_BYTES, OUT_BYTES, WS_BYTES = 2359296, 10616832, 9216, 18874368, 268435456
WS_DATA = 4096
WS_STAMP = 0x200000
LDS_X = 73728
LDS_ST = LDS_X
LDS_Q = LDS_X + 65536
LDS_BYTES = LDS_Q + 8192

S_DEF = 15
S_T5 = 16
S_PASS = 17
S_FB = 18
S_SEC = 19
S_X, S_QW, S_SC, S_ZP, S_OUT, S_WS, S_CODE = 20, 24, 28, 32, 36, 40, 44
S_W, S_RB, S_CB, S_T0, S_T1, S_TAG, S_N, S_CNT = 48, 49, 50, 51, 52, 53, 54, 55
S_O = 56
S_OQ = 60
S_HQ = 61
S_WB, S_WQ = 62, 63
S_L0 = 64
S_SCB, S_SCQ = 67, 68
S_U, S_US, S_ZS, S_HAS, S_P, S_UU = 69, 70, 71, 72, 73, 74
S_SCL = 75
S_STAMP = 76
S_T2, S_T3 = 92, 93
S_NOFF, S_T4 = 94, 95
V_HINT, V_NBO, V_NBV, V_HV = 0, 1, 2, 3
V_XX = 4
V_SB = (36, 84)
V_AC = (132, 164)
V_F = (196, 204)
V_SR = 212
V_SU = 216
V_O = (224, 228)
V_O2 = (232, 236)
V_XB = 240
V_CQ, V_TWQ = 242, 243
V_S, V_C, V_OOA, V_OOB, V_BAD, V_LANE = 244, 246, 247, 248, 249, 250
V_TWA, V_TWB, V_TR = 251, 252, 254
V_I, V_G = 245, 253
V_TW6, V_OO6 = 245, 253
V_DUMMY = 255
V_UQ = 84
V_UZ = 132
V_UR = 144
V_PQ, V_PZ, V_PS, V_PS2 = 152, 153, 154, 155
V_PR = 156
V_DM9 = 164
T1, T2, T3 = 176, 177, 178


class Item:
    def __init__(self, text, cost, rel, dl, tag=None, pred=None, kind=None):
        self.text, self.cost, self.rel, self.dl, self.tag, self.kind = text, cost, rel, dl, tag, kind
        if pred is None:
            pred = []
        elif not isinstance(pred, list):
            pred = [pred]
        self.pred = [p if isinstance(p, tuple) else (p, 0) for p in pred
                     if p is not None and (not isinstance(p, tuple) or p[0] is not None)]
        self.done = False
        self.gap = None


class Gen:
    def __init__(self, a):
        self.a = a
        self.L = []
        self.vm = []
        self.lg = []
        self.retry = []

    def e(self, s):
        self.L.append(s)

    def vmem(self, s, tag):
        self.L.append(s)
        self.vm.append(tag)

    def wait_vm(self, *tags):
        idx = max(i for i, t in enumerate(self.vm) if t in tags)
        n = len(self.vm) - 1 - idx
        assert n <= 63
        return 's_waitcnt vmcnt(%d)' % n

    def stamp(self, k, st='A'):
        ss = self.a.stampset
        if ss == 'E':
            if k == 0 and self.a.stamps:
                for j in range(8):
                    self.e('s_mov_b32 s%d, 0' % (S_STAMP + 2 * j))
            return
        if self.a.stamps and (ss == st or k == 0 or (ss == 'C' and st == 'B')):
            self.e('%s s[%d:%d]' % ('s_memtime' if ss == 'C' else 's_memrealtime', S_STAMP + 2 * k, S_STAMP + 2 * k + 1))

    def make_tag(self):
        self.e('s_mul_i32 s%d, s%d, 0x9e3779b1' % (S_TAG, S_N))
        self.e('s_add_u32 s%d, s%d, 0x7f4a7c15' % (S_TAG, S_TAG))

    def task_full(self):
        e = self.e
        e('s_mul_i32 s%d, s%d, 171' % (S_T2, S_T1))
        e('s_lshr_b32 s%d, s%d, 12' % (S_T2, S_T2))
        e('s_mul_i32 s%d, s%d, 24' % (S_T3, S_T2))
        e('s_sub_u32 s%d, s%d, s%d' % (S_T1, S_T1, S_T3))
        e('s_lshr_b32 s%d, s%d, 2' % (S_UU, S_T1))
        e('s_and_b32 s%d, s%d, 3' % (S_T1, S_T1))
        e('s_lshr_b32 s%d, s%d, 1' % (S_P, S_T2))
        e('s_lshl_b32 s%d, s%d, 3' % (S_P, S_P))
        e('s_and_b32 s%d, s%d, 1' % (S_T2, S_T2))
        e('s_add_u32 s%d, s%d, s%d' % (S_P, S_P, S_T2))
        e('v_lshlrev_b32 v%d, 8, v%d' % (T1, V_G))
        e('v_lshl_add_u32 v%d, v%d, 3, v%d' % (V_PQ, V_I, T1))
        for el in range(1, 8):
            e('v_add_u32 v%d, %d, v%d' % (V_PR + el - 1, 18432 * el, V_PQ))
        e('s_mul_i32 s%d, s%d, 96' % (S_T2, S_UU))
        e('s_lshl_b32 s%d, s%d, 3' % (S_T3, S_T1))
        e('s_add_u32 s%d, s%d, s%d' % (S_T2, S_T2, S_T3))
        e('s_mul_i32 s%d, s%d, 18432' % (S_U, S_T2))
        e('s_mul_i32 s%d, s%d, 576' % (S_T2, S_CB))
        e('s_lshl_b32 s%d, s%d, 5' % (S_T3, S_P))
        e('s_add_u32 s%d, s%d, s%d' % (S_T2, S_T2, S_T3))
        e('s_lshl_b32 s%d, s%d, 1' % (S_ZS, S_T2))
        e('s_lshl_b32 s%d, s%d, 2' % (S_T2, S_T2))
        e('s_add_u32 s%d, s%d, s%d' % (S_U, S_U, S_T2))
        e('v_lshrrev_b32 v%d, 1, v%d' % (V_PZ, V_PQ))
        e('v_mul_u32_u24 v%d, 24576, v%d' % (V_PS, V_G))
        e('v_lshl_add_u32 v%d, v%d, 4, v%d' % (V_PS, V_I, V_PS))
        e('v_add_u32 v%d, 1024, v%d' % (V_PS2, V_PS))
        e('s_mul_i32 s%d, s%d, 18' % (S_T2, S_CB))
        e('s_add_u32 s%d, s%d, s%d' % (S_T2, S_T2, S_P))
        e('s_mul_i32 s%d, s%d, 12' % (S_T2, S_T2))
        e('s_lshl_b32 s%d, s%d, 1' % (S_T3, S_UU))
        e('s_add_u32 s%d, s%d, s%d' % (S_T2, S_T2, S_T3))
        e('s_lshl_b32 s%d, s%d, 10' % (S_US, S_T2))
        e('s_lshl_b32 s%d, s%d, 8' % (S_T1, S_T1))
        e('s_add_u32 s%d, s%d, s%d' % (S_US, S_US, S_T1))
        e('s_add_u32 s%d, s%d, %d' % (S_US, S_US, WS_DATA))

    def task_quad(self):
        e = self.e
        e('s_sub_u32 s%d, s%d, 1' % (S_T1, S_SEC))
        e('s_lshr_b32 s%d, s%d, 1' % (S_UU, S_T1))
        e('s_and_b32 s%d, s%d, 1' % (S_T1, S_T1))
        e('v_and_b32 v%d, 31, v%d' % (T1, V_LANE))
        e('v_lshrrev_b32 v%d, 5, v%d' % (T2, V_LANE))
        e('v_mul_u32_u24 v%d, 147456, v%d' % (T3, T2))
        e('v_lshl_add_u32 v%d, v%d, 3, v%d' % (V_PQ, T1, T3))
        for el in range(1, 8):
            e('v_add_u32 v%d, %d, v%d' % (V_PR + el - 1, 18432 * el, V_PQ))
        e('s_mul_i32 s%d, s%d, 96' % (S_T2, S_UU))
        e('s_lshl_b32 s%d, s%d, 4' % (S_T3, S_T1))
        e('s_add_u32 s%d, s%d, s%d' % (S_T2, S_T2, S_T3))
        e('s_mul_i32 s%d, s%d, 18432' % (S_U, S_T2))
        e('s_mul_i32 s%d, s%d, 576' % (S_T2, S_CB))
        e('s_add_u32 s%d, s%d, 512' % (S_T2, S_T2))
        e('s_lshl_b32 s%d, s%d, 1' % (S_ZS, S_T2))
        e('s_lshl_b32 s%d, s%d, 2' % (S_T2, S_T2))
        e('s_add_u32 s%d, s%d, s%d' % (S_U, S_U, S_T2))
        e('v_lshlrev_b32 v%d, 2, v%d' % (V_PZ, T1))
        e('v_lshrrev_b32 v%d, 3, v%d' % (T3, T1))
        e('v_mul_u32_u24 v%d, 6144, v%d' % (T3, T3))
        e('v_lshl_add_u32 v%d, v%d, 8, v%d' % (T3, T2, T3))
        e('v_and_b32 v%d, 7, v%d' % (T1, T1))
        e('v_lshl_add_u32 v%d, v%d, 5, v%d' % (V_PS, T1, T3))
        e('v_add_u32 v%d, 16, v%d' % (V_PS2, V_PS))
        e('s_mul_i32 s%d, s%d, 18' % (S_T2, S_CB))
        e('s_add_u32 s%d, s%d, 16' % (S_T2, S_T2))
        e('s_mul_i32 s%d, s%d, 12288' % (S_US, S_T2))
        e('s_lshl_b32 s%d, s%d, 10' % (S_T3, S_UU))
        e('s_add_u32 s%d, s%d, s%d' % (S_US, S_US, S_T3))
        e('s_lshl_b32 s%d, s%d, 9' % (S_T1, S_T1))
        e('s_add_u32 s%d, s%d, s%d' % (S_US, S_US, S_T1))
        e('s_add_u32 s%d, s%d, %d' % (S_US, S_US, WS_DATA))

    def prologue0(self, n):
        a, e = self.a, self.e
        e('s_cmp_ge_u32 s2, 256')
        e('s_cbranch_scc1 %s_done' % n)
        e('s_load_dwordx2 s[%d:%d], s[0:1], 8' % (S_QW, S_QW + 1))
        e('s_load_dwordx2 s[%d:%d], s[0:1], 0' % (S_X, S_X + 1))
        e('s_load_dwordx2 s[%d:%d], s[0:1], 24' % (S_ZP, S_ZP + 1))
        e('s_load_dwordx2 s[%d:%d], s[0:1], 48' % (S_WS, S_WS + 1))
        e('s_load_dwordx2 s[%d:%d], s[0:1], 16' % (S_SC, S_SC + 1))
        e('s_load_dwordx2 s[%d:%d], s[0:1], 32' % (S_OUT, S_OUT + 1))
        self.stamp(0)
        e('v_lshrrev_b32 v%d, 6, v0' % T1)
        e('v_and_b32 v%d, 63, v0' % V_LANE)
        e('v_readfirstlane_b32 s%d, v%d' % (S_W, T1))
        for r, nb in ((S_QW, QW_BYTES), (S_X, X_BYTES), (S_ZP, SC_BYTES), (S_WS, WS_BYTES), (S_SC, SC_BYTES), (S_OUT, OUT_BYTES)):
            e('s_mov_b32 s%d, %d' % (r + 2, nb))
            e('s_mov_b32 s%d, 0x00020000' % (r + 3))
        e('s_and_b32 s%d, s2, 7' % S_T0)
        e('s_lshr_b32 s%d, s2, 3' % S_T1)
        e('s_lshl_b32 s%d, s%d, 2' % (S_RB, S_T0))
        e('s_and_b32 s%d, s%d, 3' % (S_T2, S_T1))
        e('s_add_u32 s%d, s%d, s%d' % (S_RB, S_RB, S_T2))
        e('s_lshr_b32 s%d, s%d, 2' % (S_CB, S_T1))
        e('v_and_b32 v%d, 15, v%d' % (V_I, V_LANE))
        e('v_lshrrev_b32 v%d, 4, v%d' % (V_G, V_LANE))
        e('s_lshl_b32 s%d, s%d, 8' % (S_NOFF, S_CB))
        e('s_mov_b32 s%d, 0' % S_FB)
        e('s_mov_b32 s%d, 0' % S_SEC)
        e('s_mov_b32 s%d, 0' % S_DEF)
        e('s_mov_b32 s%d, 0' % S_HAS)
        e('s_cmp_eq_u32 s%d, 3' % S_W)
        e('s_cbranch_scc1 %s_p0w3' % n)
        e('s_lshl_b32 s%d, s%d, 5' % (S_T1, S_W))
        e('s_add_u32 s%d, s%d, s%d' % (S_T1, S_T1, S_RB))
        self.task_full()
        e('s_mov_b32 s%d, 1' % S_HAS)
        e('s_branch %s_p0end' % n)
        e('%s_p0w3:' % n)
        e('s_and_b32 s%d, s%d, 1' % (S_T2, S_CB))
        e('s_lshl_b32 s%d, s%d, 2' % (S_T2, S_T2))
        e('s_add_u32 s%d, s%d, s%d' % (S_T2, S_T2, S_RB))
        e('s_and_b32 s%d, s%d, 7' % (S_T3, S_T2))
        e('s_bfe_u32 s%d, s%d, 0x20003' % (S_T2, S_T2))
        e('s_mul_i32 s%d, s%d, 3' % (S_T2, S_T2))
        e('s_add_u32 s%d, s%d, s%d' % (S_SEC, S_T2, S_T3))
        e('s_add_u32 s%d, s%d, 1' % (S_SEC, S_SEC))
        e('s_cmp_lt_u32 s%d, 3' % S_T3)
        e('s_cselect_b32 s%d, 1, 0' % S_HAS)
        e('s_cselect_b32 s%d, s%d, 1' % (S_SEC, S_SEC))
        self.task_quad()
        e('%s_p0end:' % n)
        if a.flow == 'bp':
            self.x3_offsets()
        if a.flow == 'bq' and a.own:
            e('s_cmp_eq_u32 s%d, 0' % S_W)
            e('s_cbranch_scc1 %s_p0w0' % n)
            self.x_offsets()
            e('%s_p0w0:' % n)
        e('s_waitcnt lgkmcnt(0)')
        self.stamp(1)
        e('s_load_dword s%d, s[%d:%d], s%d' % (S_N, S_WS, S_WS + 1, S_NOFF))

    def x_offsets(self):
        e = self.e
        e('s_and_b32 s%d, s%d, 1' % (S_T2, S_CB))
        e('s_lshl_b32 s%d, s%d, 2' % (S_T2, S_T2))
        e('v_xor_b32 v%d, s%d, v%d' % (T3, S_T2, V_LANE))
        for b in range(9):
            e('v_add_u32 v%d, %d, v%d' % (T1, 64 * b, T3))
            e('v_mul_u32_u24 v%d, 911, v%d' % (T2, T1))
            e('v_lshrrev_b32 v%d, 17, v%d' % (T2, T2))
            e('v_xor_b32 v%d, v%d, v%d' % (T1, T1, T2))
            e('v_lshlrev_b32 v%d, 4, v%d' % (V_DM9 + b, T1))

    def x_warm(self):
        e = self.e
        e('s_mul_i32 s%d, s%d, %d' % (S_T0, S_RB, 64 * 1152))
        e('s_mul_i32 s%d, s%d, 9216' % (S_T1, S_CB))
        e('s_add_u32 s%d, s%d, s%d' % (S_T0, S_T0, S_T1))
        e('v_lshlrev_b32 v%d, 7, v%d' % (T1, V_LANE))
        e('v_min_u32 v%d, 7, v%d' % (T2, V_LANE))
        e('v_lshlrev_b32 v%d, 7, v%d' % (T2, T2))
        e('v_add_u32 v%d, 8192, v%d' % (T2, T2))
        e('buffer_load_dword v%d, v%d, s[%d:%d], s%d offen' % (V_DUMMY, T1, S_X, S_X + 3, S_T0))
        e('buffer_load_dword v%d, v%d, s[%d:%d], s%d offen' % (V_DUMMY, T2, S_X, S_X + 3, S_T0))

    def prologue1(self, n):
        a, e = self.a, self.e
        e('v_lshlrev_b32 v%d, 4, v%d' % (V_S, V_LANE))
        e('v_lshlrev_b32 v%d, 4, v%d' % (V_C, V_G))
        e('v_lshlrev_b32 v%d, 3, v%d' % (V_CQ, V_G))
        e('s_mul_i32 s%d, s%d, 18' % (S_T0, S_CB))
        e('s_lshl_b32 s%d, s%d, 1' % (S_T3, S_W))
        e('s_add_u32 s%d, s%d, s%d' % (S_T1, S_T0, S_T3))
        e('s_mul_i32 s%d, s%d, 12288' % (S_WB, S_T1))
        e('s_add_u32 s%d, s%d, %d' % (S_WB, S_WB, WS_DATA))
        e('s_add_u32 s%d, s%d, 16' % (S_T1, S_T0))
        e('s_mul_i32 s%d, s%d, 12288' % (S_T1, S_T1))
        e('s_add_u32 s%d, s%d, %d' % (S_T1, S_T1, WS_DATA))
        e('s_mul_i32 s%d, s%d, 6144' % (S_T2, S_W))
        e('s_add_u32 s%d, s%d, s%d' % (S_WQ, S_T1, S_T2))
        e('s_min_u32 s%d, s%d, 12288' % (S_T2, S_T2))
        e('s_add_u32 s%d, s%d, s%d' % (S_HQ, S_T1, S_T2))
        e('s_mul_i32 s%d, s%d, 1152' % (S_T1, S_CB))
        e('s_lshl_b32 s%d, s%d, 7' % (S_T3, S_W))
        e('s_add_u32 s%d, s%d, s%d' % (S_SCB, S_T1, S_T3))
        e('s_lshl_b32 s%d, s%d, 5' % (S_T2, S_W))
        e('s_add_u32 s%d, s%d, s%d' % (S_SCQ, S_T1, S_T2))
        e('s_add_u32 s%d, s%d, 1024' % (S_SCQ, S_SCQ))
        e('s_mul_i32 s%d, s%d, %d' % (S_T2, S_RB, 64 * 9216))
        e('s_add_u32 s%d, s%d, s%d' % (S_O, S_T1, S_T2))
        for sg in range(1, 4):
            e('s_add_u32 s%d, s%d, %d' % (S_O + sg, S_O, 147456 * sg))
        e('s_mul_i32 s%d, s%d, 147456' % (S_T2, S_W))
        e('s_add_u32 s%d, s%d, s%d' % (S_OQ, S_O, S_T2))
        e('s_add_u32 s%d, s%d, 1024' % (S_OQ, S_OQ))
        e('s_sub_u32 s%d, s%d, s%d' % (S_OQ, S_OQ, S_T3))
        e('s_mov_b32 s%d, 2.0' % S_SCL)
        e('s_lshl_b32 s%d, s%d, 7' % (S_T5, S_W))
        e('s_lshl_b32 s%d, s%d, 14' % (S_T1, S_W))
        e('s_add_u32 s%d, s%d, %d' % (S_T1, S_T1, LDS_ST))
        e('v_add_u32 v%d, s%d, v%d' % (V_TR, S_T1, V_S))
        e('v_and_b32 v%d, 7, v%d' % (T1, V_I))
        e('v_xor_b32 v%d, v%d, v%d' % (T2, T1, V_G))
        e('v_lshlrev_b32 v%d, 4, v%d' % (T2, T2))
        e('v_lshl_add_u32 v%d, v%d, 7, v%d' % (T2, V_I, T2))
        e('v_add_u32 v%d, s%d, v%d' % (V_TWA, S_T1, T2))
        e('v_xor_b32 v%d, 64, v%d' % (V_TWB, V_TWA))
        e('s_lshl_b32 s%d, s%d, 1' % (S_T2, S_W))
        e('v_lshrrev_b32 v%d, 1, v%d' % (T2, V_G))
        e('v_add_u32 v%d, s%d, v%d' % (T2, S_T2, T2))
        e('v_xor_b32 v%d, v%d, v%d' % (T2, T2, T1))
        e('v_lshlrev_b32 v%d, 4, v%d' % (T2, T2))
        e('v_lshl_add_u32 v%d, v%d, 7, v%d' % (T2, V_I, T2))
        e('v_and_b32 v%d, 1, v%d' % (T3, V_G))
        e('v_lshl_add_u32 v%d, v%d, 3, v%d' % (T2, T3, T2))
        e('v_add_u32 v%d, %d, v%d' % (V_TWQ, LDS_Q, T2))
        e('v_lshrrev_b32 v%d, 3, v%d' % (T1, V_LANE))
        e('v_and_b32 v%d, 7, v%d' % (T2, V_LANE))
        e('v_xor_b32 v%d, v%d, v%d' % (T2, T2, T1))
        e('v_mul_u32_u24 v%d, 9216, v%d' % (T1, T1))
        e('v_lshl_add_u32 v%d, v%d, 4, v%d' % (T1, T2, T1))
        e('v_add_u32 v%d, s%d, v%d' % (V_OOA, S_T3, T1))
        e('v_add_u32 v%d, %d, v%d' % (V_OOB, 8 * 9216, V_OOA))
        e('v_bfe_u32 v%d, v%d, 1, 3' % (T1, V_I))
        e('v_xor_b32 v%d, v%d, v%d' % (T1, T1, V_G))
        e('v_lshlrev_b32 v%d, 4, v%d' % (T1, T1))
        e('v_mul_u32_u24 v%d, 1152, v%d' % (T2, V_I))
        e('v_add_u32 v%d, v%d, v%d' % (V_XB, T1, T2))
        e('v_xor_b32 v%d, 64, v%d' % (V_XB + 1, V_XB))
        e('v_min_u32 v%d, 47, v%d' % (T1, V_LANE))
        e('v_lshrrev_b32 v%d, 2, v%d' % (T2, T1))
        e('v_and_b32 v%d, 3, v%d' % (T1, T1))
        e('v_lshlrev_b32 v%d, 8, v%d' % (T1, T1))
        e('v_lshl_add_u32 v%d, v%d, 10, v%d' % (T1, T2, T1))
        e('v_add_u32 v%d, 12, v%d' % (V_HINT, T1))
        e('s_lshl_b32 s%d, s%d, 14' % (S_T1, S_W))
        e('s_add_u32 s%d, s%d, %d' % (S_T1, S_T1, LDS_ST + 8192))
        e('v_bfe_u32 v%d, v%d, 1, 2' % (T1, V_I))
        e('v_xor_b32 v%d, v%d, v%d' % (T1, T1, V_G))
        e('v_lshl_add_u32 v%d, v%d, 2, v%d' % (T1, V_I, T1))
        e('v_lshlrev_b32 v%d, 4, v%d' % (T1, T1))
        if a.split == 2:
            e('v_mul_u32_u24 v%d, 9216, v%d' % (T1, V_I))
            e('v_add_u32 v%d, v%d, v%d' % (T1, T1, V_C))
            e('v_add_u32 v%d, s%d, v%d' % (V_TW6, S_T5, T1))
        else:
            e('v_add_u32 v%d, s%d, v%d' % (V_TW6, S_T1, T1))
        e('v_lshrrev_b32 v%d, 2, v%d' % (T1, V_LANE))
        e('v_mul_u32_u24 v%d, 9216, v%d' % (T1, T1))
        e('v_bfe_u32 v%d, v%d, 3, 2' % (T2, V_LANE))
        e('v_and_b32 v%d, 3, v%d' % (T3, V_LANE))
        e('v_xor_b32 v%d, v%d, v%d' % (T2, T2, T3))
        e('v_lshl_add_u32 v%d, v%d, 4, v%d' % (T1, T2, T1))
        e('v_add_u32 v%d, s%d, v%d' % (V_OO6, S_T5, T1))
        e('s_lshl_b32 s%d, s%d, 6' % (S_T2, S_W))
        e('v_add_u32 v%d, s%d, v%d' % (T1, S_T2, V_LANE))
        e('v_cmp_eq_u32 vcc, 0, v%d' % T1)
        e('v_mov_b32 v%d, s%d' % (T2, S_NOFF))
        e('v_mov_b32 v%d, 2' % V_NBV)
        e('v_mov_b32 v%d, 0x7ffffff0' % V_NBO)
        e('v_cndmask_b32 v%d, v%d, v%d, vcc' % (V_NBO, V_NBO, T2))

    def code_prefetch(self, n):
        a, e = self.a, self.e
        if a.pf:
            e('s_getpc_b64 s[%d:%d]' % (S_CODE, S_CODE + 1))
            lbl = '%s_pc%d' % (n, len(self.L))
            e('%s:' % lbl)
            e('s_mov_b32 s%d, %s_end-%s' % (S_CODE + 2, n, lbl))
            e('s_mov_b32 s%d, 0x00020000' % (S_CODE + 3))
            e('s_lshr_b32 s%d, s2, 3' % S_T0)
            e('s_lshl_b32 s%d, s%d, 10' % (S_T0, S_T0))
            e('v_and_b32 v%d, 7, v%d' % (T1, V_LANE))
            e('v_lshlrev_b32 v%d, 7, v%d' % (T1, T1))
            self.vmem('buffer_load_dword v%d, v%d, s[%d:%d], s%d offen' % (V_DUMMY, T1, S_CODE, S_CODE + 3, S_T0), 'pf')
        if a.warm:
            e('s_mul_i32 s%d, s%d, 1152' % (S_T0, S_CB))
            e('v_min_u32 v%d, 8, v%d' % (T1, V_LANE))
            e('v_lshlrev_b32 v%d, 7, v%d' % (T1, T1))
            self.vmem('buffer_load_dword v%d, v%d, s[%d:%d], s%d offen' % (V_DUMMY, T1, S_SC, S_SC + 3, S_T0), 'pf')

    def qreg(self, ks, el, deferred):
        i = 8 * ks + el
        if not deferred:
            return V_UQ + 2 * i
        return 164 + 2 * i if i < 16 else 224 + 2 * (i - 16)

    def unit_loads(self, deferred=False):
        a, e = self.a, self.e
        nt = ' nt' if a.qnt else ''
        self.vmem('buffer_load_dword v%d, v%d, s[%d:%d], s%d offen' % (216 if deferred else V_UZ, V_PZ, S_ZP, S_ZP + 3, S_ZS), 'z')
        for ks in range(3):
            if ks:
                e('s_add_u32 s%d, s%d, %d' % (S_U, S_U, 18432 * 32))
            for el in range(8):
                r = self.qreg(ks, el, deferred)
                self.vmem('buffer_load_dwordx2 v[%d:%d], v%d, s[%d:%d], s%d offen%s' % (
                    r, r + 1, V_PQ if el == 0 else V_PR + el - 1, S_QW, S_QW + 3, S_U, nt), 'unit')

    def x_dma(self, n, j0=0, j1=2):
        a, e = self.a, self.e
        nt = ' nt' if a.xnt else ''
        e('s_mul_i32 s%d, s%d, %d' % (S_T0, S_RB, 64 * 1152))
        e('s_lshl_b32 s%d, s%d, 1' % (S_T2, S_W))
        e('s_add_u32 s%d, s%d, s%d' % (S_T2, S_T2, S_CB))
        for j in range(j0, j1):
            e('s_add_u32 s%d, s%d, %d' % (S_T3, S_T2, j))
            e('s_and_b32 s%d, s%d, 7' % (S_T3, S_T3))
            e('s_mul_i32 s%d, s%d, 9216' % (S_T4, S_T3))
            e('s_add_u32 s%d, s%d, s%d' % (S_L0, S_T4, S_T0))
            for b in range(9):
                e('s_add_u32 m0, s%d, %d' % (S_T4, b * 1024))
                e('s_nop 0')
                self.vmem('buffer_load_dwordx4 v%d, s[%d:%d], s%d offen%s lds' % (V_DM9 + b, S_X, S_X + 3, S_L0, nt), 'xdma')
            if j == 0:
                for b in range(9):
                    e('v_xor_b32 v%d, 64, v%d' % (V_DM9 + b, V_DM9 + b))

    def x3_offsets(self):
        e = self.e
        e('s_sub_u32 s%d, s%d, 1' % (S_T1, S_W))
        e('s_mul_i32 s%d, s%d, 192' % (S_T1, S_T1))
        for i in range(3):
            e('v_add_u32 v%d, s%d, v%d' % (T1, S_T1, V_LANE))
            if i:
                e('v_add_u32 v%d, %d, v%d' % (T1, 64 * i, T1))
            e('v_mul_u32_u24 v%d, 911, v%d' % (T2, T1))
            e('v_lshrrev_b32 v%d, 16, v%d' % (T2, T2))
            e('v_mul_u32_u24 v%d, 72, v%d' % (T3, T2))
            e('v_sub_u32 v%d, v%d, v%d' % (T1, T1, T3))
            e('v_lshrrev_b32 v%d, 1, v%d' % (T3, T2))
            e('v_xor_b32 v%d, v%d, v%d' % (T1, T1, T3))
            e('v_mul_u32_u24 v%d, 1152, v%d' % (T2, T2))
            e('v_lshl_add_u32 v%d, v%d, 4, v%d' % (V_DM9 + i, T1, T2))
        e('s_sub_u32 s%d, s%d, 1' % (S_UU, S_W))
        e('s_mul_i32 s%d, s%d, 3072' % (S_UU, S_UU))

    def x3_dma(self, n, j0, j1):
        a, e = self.a, self.e
        nt = ' nt' if a.xnt else ''
        e('s_mul_i32 s%d, s%d, %d' % (S_T0, S_RB, 64 * 1152))
        e('s_mov_b32 s%d, %d' % (S_T2, j0))
        lbl = '%s_xloop%d' % (n, j0)
        e('%s:' % lbl)
        e('s_add_u32 s%d, s%d, s%d' % (S_T3, S_CB, S_T2))
        e('s_and_b32 s%d, s%d, 7' % (S_T3, S_T3))
        e('s_mul_i32 s%d, s%d, 9216' % (S_T4, S_T3))
        e('s_and_b32 s%d, s%d, 1' % (S_T3, S_T3))
        e('s_lshl_b32 s%d, s%d, 6' % (S_T3, S_T3))
        for i in range(3):
            e('v_xor_b32 v%d, s%d, v%d' % (V_DM9 + 3 + i, S_T3, V_DM9 + i))
        e('s_add_u32 s%d, s%d, s%d' % (S_L0, S_T4, S_T0))
        e('s_add_u32 s%d, s%d, s%d' % (S_L0 + 1, S_T4, S_UU))
        for i in range(3):
            e('s_add_u32 m0, s%d, %d' % (S_L0 + 1, i * 1024))
            e('s_nop 0')
            e('buffer_load_dwordx4 v%d, s[%d:%d], s%d offen%s lds' % (V_DM9 + 3 + i, S_X, S_X + 3, S_L0, nt))
        if j1 - j0 > 1:
            e('s_add_u32 s%d, s%d, 1' % (S_T2, S_T2))
            e('s_cmp_lt_u32 s%d, %d' % (S_T2, j1))
            e('s_cbranch_scc1 %s' % lbl)
        self.vm += ['xdma'] * (3 * (j1 - j0))

    def pack_publish(self, lbl, deferred=False):
        a, e = self.a, self.e
        if deferred:
            UZ, A, B, C, D, ACC, F, G = 216, 219, 220, 221, 222, 223, 3, 255
            R = (164, 168)
            PS, PS2 = 217, 218
        else:
            UZ, A, B, C, D, ACC, F, G = V_UZ, 133, 134, 135, 136, 137, 138, 139
            R = (V_UR, V_UR + 4)
            PS, PS2 = V_PS, V_PS2
        e('v_lshlrev_b32 v%d, 16, v%d' % (A, UZ))
        e('v_and_b32 v%d, 0xffff0000, v%d' % (B, UZ))
        e('v_cvt_u32_f32 v%d, v%d' % (C, A))
        e('v_cvt_u32_f32 v%d, v%d' % (D, B))
        e('v_cvt_f32_u32 v%d, v%d' % (F, C))
        e('v_cvt_f32_u32 v%d, v%d' % (G, D))
        e('v_or_b32 v%d, v%d, v%d' % (ACC, C, D))
        e('v_cmp_neq_f32 s[%d:%d], v%d, v%d' % (S_T2, S_T3, F, A))
        e('v_cmp_neq_f32 vcc, v%d, v%d' % (G, B))
        e('v_sub_u32 v%d, 3, v%d' % (C, C))
        e('v_sub_u32 v%d, 3, v%d' % (D, D))
        e('s_or_b64 s[%d:%d], s[%d:%d], vcc' % (S_T2, S_T3, S_T2, S_T3))
        e('v_mov_b32 v%d, 0x00090a0b' % F)
        e('s_mov_b32 s%d, 0x00030201' % S_T0)
        e('v_alignbyte_b32 v%d, s%d, v%d, v%d' % (C, S_T0, F, C))
        e('v_alignbyte_b32 v%d, s%d, v%d, v%d' % (D, S_T0, F, D))
        q = lambda ks, el, t: self.qreg(ks, el, deferred) + t
        for ks in range(3):
            for el in range(8):
                e('v_or3_b32 v%d, v%d, v%d, v%d' % (ACC, ACC, q(ks, el, 0), q(ks, el, 1)))
        LO, HI = A, B
        for ks in range(3):
            for t in range(2):
                T = C if t == 0 else D
                e('v_lshl_or_b32 v%d, v%d, 8, v%d' % (LO, q(ks, 6, t), q(ks, 4, t)))
                e('v_lshl_or_b32 v%d, v%d, 8, v%d' % (HI, q(ks, 7, t), q(ks, 5, t)))
                e('v_lshl_or_b32 v%d, v%d, 8, v%d' % (LO, LO, q(ks, 2, t)))
                e('v_lshl_or_b32 v%d, v%d, 8, v%d' % (HI, HI, q(ks, 3, t)))
                e('v_lshl_or_b32 v%d, v%d, 8, v%d' % (LO, LO, q(ks, 0, t)))
                e('v_lshl_or_b32 v%d, v%d, 8, v%d' % (HI, HI, q(ks, 1, t)))
                e('v_perm_b32 v%d, v%d, v%d, v%d' % (LO, T, T, LO))
                e('v_perm_b32 v%d, v%d, v%d, v%d' % (HI, T, T, HI))
                e('v_lshl_or_b32 v%d, v%d, 4, v%d' % (R[t] + ks, HI, LO))
        e('v_and_b32 v%d, 0xfffffffc, v%d' % (ACC, ACC))
        e('v_cmp_ne_u32 vcc, 0, v%d' % ACC)
        e('v_mov_b32 v%d, s%d' % (R[0] + 3, S_TAG))
        e('v_mov_b32 v%d, s%d' % (R[1] + 3, S_TAG))
        e('s_or_b64 s[%d:%d], s[%d:%d], vcc' % (S_T2, S_T3, S_T2, S_T3))
        e('s_mov_b32 s%d, 0' % S_HAS)
        e('s_cmp_lg_u64 s[%d:%d], 0' % (S_T2, S_T3))
        e('s_cbranch_scc1 %s' % lbl)
        e('s_mov_b32 s%d, 1' % S_HAS)
        self.vmem('buffer_store_dwordx4 v[%d:%d], v%d, s[%d:%d], s%d offen sc1' % (R[0], R[0] + 3, PS, S_WS, S_WS + 3, S_US), 'pub')
        self.vmem('buffer_store_dwordx4 v[%d:%d], v%d, s[%d:%d], s%d offen sc1' % (R[1], R[1] + 3, PS2, S_WS, S_WS + 3, S_US), 'pub')
        e('%s:' % lbl)

    def xreg(self, s, sg):
        i = s * 4 + sg
        if s < 16:
            return 'a[%d:%d]' % (4 * i, 4 * i + 3)
        r = V_XX + 4 * (i - 64)
        return 'v[%d:%d]' % (r, r + 3)

    def x_read(self, s, sg):
        return 'ds_read_b128 %s, v%d offset:%d' % (self.xreg(s, sg), V_XB + (s & 1), sg * 18432 + (s >> 1) * 128)

    def stage_params(self, kind, st):
        if kind == 'full':
            q0 = 8 * (st >> 1) + (st & 1)
            return dict(kind=kind, st=st, wadd=q0 * 12288, wb=S_WB, scb=S_SCB, scadd=64 * q0, nt=2, nslot=12)
        return dict(kind=kind, st=st, wadd=0, wb=S_WQ, scb=S_SCQ, scadd=0, nt=1, nslot=6)

    def slot_addr(self, P):
        sb = P.get('sb', S_L0)
        return ['s_add_u32 s%d, s%d, %d' % (sb + j, P['wb'], P['wadd'] + 4096 * j) for j in range(-(-P['nslot'] // 4))]

    def slot_loads(self, P, buf):
        L = []
        for j in range(P['nslot']):
            r = V_SB[buf] + 4 * j
            off = (j % 4) * 1024
            L.append('buffer_load_dwordx4 v[%d:%d], v%d, s[%d:%d], s%d offen%s sc1' % (
                r, r + 3, V_S, S_WS, S_WS + 3, P.get('sb', S_L0) + j // 4, (' offset:%d' % off) if off else ''))
        return L

    def xads(self, P, buf):
        return ['v_xad_u32 v%d, v%d, s%d, %s' % (V_BAD, V_SB[buf] + 4 * j + 3, S_TAG, '0' if j == 0 else 'v%d' % V_BAD)
                for j in range(P['nslot'])]

    def acquire_loop(self, n, P, buf, lbl, back, fail=None):
        e = self.e
        e('%s:' % lbl)
        e('s_mov_b32 s%d, 0' % S_CNT)
        for ins in self.slot_addr(P):
            e(ins)
        entry = lbl
        lbl = lbl + '_loop'
        e('%s:' % lbl)
        if self.a.nohint:
            e('s_cmp_lt_u32 s%d, %d' % (S_CNT, self.a.nohint))
            e('s_cbranch_scc1 %s_full' % lbl)
        e('buffer_load_dword v%d, v%d, s[%d:%d], s%d offen sc1' % (V_HV, V_HINT, S_WS, S_WS + 3, P.get('sb', S_L0) if P['kind'] == 'full' else S_HQ))
        e('s_waitcnt vmcnt(0)')
        e('v_cmp_ne_u32 vcc, s%d, v%d' % (S_TAG, V_HV))
        e('s_cbranch_vccnz %s_again' % lbl)
        e('%s_full:' % lbl)
        for ins in self.slot_loads(P, buf):
            e(ins)
        e('s_waitcnt vmcnt(0)')
        for ins in self.xads(P, buf):
            e(ins)
        e('v_cmp_ne_u32 vcc, 0, v%d' % V_BAD)
        if self.a.stamps and self.a.stampset == 'E':
            k = 1 + int(back[-1]) if back[-1].isdigit() else 7
            e('s_add_u32 s%d, s%d, 1' % (S_STAMP + 2 * k, S_CNT))
        e('s_cbranch_vccz %s' % back)
        e('%s_again:' % lbl)
        e('s_add_u32 s%d, s%d, 1' % (S_CNT, S_CNT))
        e('s_cmp_lt_u32 s%d, %d' % (S_CNT, self.a.limit))
        e('s_cbranch_scc1 %s' % lbl)
        e('s_branch %s' % (fail or '%s_fallback' % n))

    def cvts(self, P, buf, s, fb):
        u, ks = s // 3, s % 3
        L = []
        for t in range(P['nt']):
            src = V_SB[buf] + 4 * (P['nt'] * u + t) + ks
            L.append(['v_cvt_scalef32_pk_bf16_fp4 v%d, v%d, s%d op_sel:[%d,%d,0]' % (V_F[fb] + 4 * t + j, src, S_SCL, j & 1, j >> 1)
                      for j in range(4)])
        return L

    def unpacks(self, P):
        L = []
        if P['kind'] == 'full':
            for r in range(4):
                L.append('v_lshlrev_b32 v%d, 16, v%d' % (V_SU + r, V_SR + r))
                L.append('v_and_b32 v%d, 0xffff0000, v%d' % (V_SU + 4 + r, V_SR + r))
        else:
            for r in range(2):
                L.append('v_lshlrev_b32 v%d, 16, v%d' % (V_SU + 2 * r, V_SR + r))
                L.append('v_and_b32 v%d, 0xffff0000, v%d' % (V_SU + 2 * r + 1, V_SR + r))
        return L

    def scale_load(self, P):
        if P['kind'] == 'full':
            return ['s_add_u32 s%d, s%d, %d' % (S_T0, P['scb'], P['scadd']),
                    'buffer_load_dwordx4 v[%d:%d], v%d, s[%d:%d], s%d offen' % (V_SR, V_SR + 3, V_C, S_SC, S_SC + 3, S_T0)]
        return ['s_mov_b32 s%d, s%d' % (S_T0, P['scb']),
                'buffer_load_dwordx2 v[%d:%d], v%d, s[%d:%d], s%d offen' % (V_SR, V_SR + 1, V_CQ, S_SC, S_SC + 3, S_T0)]

    def epi_w(self, P, acset, sg):
        L = []
        a0 = V_AC[acset] + 4 * sg
        a1 = V_AC[acset] + 16 + 4 * sg
        o = V_O[sg & 1]
        for r in range(4):
            L.append(('v_mul_f32 v%d, v%d, v%d' % (a0 + r, a0 + r, V_SU + r), 1))
            L.append(('v_mul_f32 v%d, v%d, v%d' % (a1 + r, a1 + r, V_SU + 4 + r), 1))
        for r in range(4):
            L.append(('v_cvt_pk_bf16_f32 v%d, v%d, v%d' % (o + r, a0 + r, a1 + r), 1))
        st = P['st']
        if self.a.split == 2 and st >= 2:
            L.append(('buffer_store_dwordx4 v[%d:%d], v%d, s[%d:%d], s%d offen offset:%d%s' % (
                o, o + 3, V_TW6, S_OUT, S_OUT + 3, S_O + sg, 512 + 64 * (st & 1), self.a.oflags), 2))
        elif self.a.split and st >= 2:
            L.append(('ds_write_b128 v%d, v[%d:%d] offset:%d' % (V_TW6, o, o + 3, (st & 1) * 4096 + sg * 1024), 2))
        else:
            L.append(('ds_write_b128 v%d, v[%d:%d] offset:%d' % (V_TWB if st & 1 else V_TWA, o, o + 3, (st >> 1) * 8192 + sg * 2048), 2))
        return L

    def epi_r(self, P, sg, hh, k):
        o2 = V_O2[k & 1]
        if self.a.split and P['st'] >= 2:
            st = P['st']
            rd = 'ds_read_b128 v[%d:%d], v%d offset:%d' % (o2, o2 + 3, V_TR, 8192 + (st & 1) * 4096 + sg * 1024)
            stt = 'buffer_store_dwordx4 v[%d:%d], v%d, s[%d:%d], s%d offen offset:%d%s' % (
                o2, o2 + 3, V_OO6, S_OUT, S_OUT + 3, S_O + sg, 512 + 64 * (st & 1), self.a.oflags)
            return rd, stt
        jj = P['st'] >> 1
        rd = 'ds_read_b128 v[%d:%d], v%d offset:%d' % (o2, o2 + 3, V_TR, jj * 8192 + sg * 2048 + hh * 1024)
        imm = (' offset:%d' % (512 * jj)) if jj else ''
        stt = 'buffer_store_dwordx4 v[%d:%d], v%d, s[%d:%d], s%d offen%s%s' % (
            o2, o2 + 3, V_OOB if hh else V_OOA, S_OUT, S_OUT + 3, S_O + sg, imm, self.a.oflags)
        return rd, stt

    def main_loop(self, n, stages):
        a = self.a
        M = []
        start = []
        for si, (kind, st) in enumerate(stages):
            P = self.stage_params(kind, st)
            start.append(len(M))
            for s in range(18):
                if a.morder == 'sig' and P['nt'] == 2:
                    order = [(t, sg) for sg in range(4) for t in range(2)]
                else:
                    order = [(t, sg) for t in range(P['nt']) for sg in range(4)]
                for t, sg in order:
                    ac = V_AC[si & 1] + 16 * t + 4 * sg
                    f = V_F[s & 1] + 4 * t
                    c = '0' if s == 0 else 'v[%d:%d]' % (ac, ac + 3)
                    M.append(('v_mfma_f32_16x16x32_bf16 v[%d:%d], v[%d:%d], %s, %s' % (ac, ac + 3, f, f + 3, self.xreg(s, sg), c), si, s, t, sg))
        start.append(len(M))
        first_use, last_use, last_wr = {}, {}, {}
        for i, (_, si, s, t, sg) in enumerate(M):
            first_use.setdefault((si, s, t), i)
            last_use[(si, s, t)] = i
            last_wr[(si, t, sg)] = i
        items, hard = [], []

        def add(text, cost, rel, dl, tag=None, pred=None, kind=None):
            it = Item(text, cost, rel, dl, tag, pred, kind)
            items.append(it)
            return it
        branch_of = {}
        last_mul = None
        stores, reads = [], []
        for si, (kind, st) in enumerate(stages):
            P = self.stage_params(kind, st)
            g0, g1 = start[si], start[si + 1]
            ng = g1 - g0
            per = ng // 18
            nxt = self.stage_params(*stages[si + 1]) if si + 1 < len(stages) else None
            prv = self.stage_params(*stages[si - 1]) if si > 0 else None
            buf = si & 1
            lastld = None
            ld0 = g0 + (per * a.ld0 if si == 0 else 0)
            span = int(ng * (a.ldspan0 if si == 0 else a.ldspan))
            if nxt:
                p = None
                for ins in self.slot_addr(nxt):
                    p = add(ins, 1, max(g0, ld0 - 4), max(g0, ld0 - 4) + 3, pred=p)
                ll = self.slot_loads(nxt, buf ^ 1)
                for j, ins in enumerate(ll):
                    p = add(ins, 2, ld0 + 1, ld0 + 4 + (j + 1) * span // len(ll), tag='slot', pred=p)
                lastld = p
            else:
                add('buffer_atomic_add v%d, v%d, s[%d:%d], 0 offen sc1' % (V_NBV, V_NBO, S_WS, S_WS + 3), 2, g0 + 2, g0 + 10, tag='nb')
            p = None
            if prv:
                for j, ins in enumerate(self.unpacks(prv)):
                    p = add(ins, 1, g0, g0 + 12, pred=[p, last_mul] if j == 0 else p)
            unp = p
            sl = self.scale_load(P)
            p = add(sl[0], 1, ld0 + 2, ld0 + span + 6, pred=unp)
            scl = add(sl[1], 2, ld0 + 2, ld0 + span + 10, tag='scale', pred=[p, lastld])
            if prv:
                w0, w1 = g0 + 6, g0 + int(ng * a.epiend)
                dswr = []
                for sg in range(4):
                    rel = max(last_wr[(si - 1, 0, sg)], last_wr[(si - 1, 1, sg)]) + 5
                    L = self.epi_w(prv, (si - 1) & 1, sg)
                    lo = w0 + (w1 - w0) * sg // 4
                    hi = w0 + (w1 - w0) * (sg + 1) // 4
                    p = unp
                    for j, (ins, cost) in enumerate(L):
                        dl = lo + (hi - lo) * (j + 1) // len(L)
                        pr = [p]
                        if j == 0 and sg > 0:
                            pr.append(last_mul)
                        if j == 8 and sg >= 2:
                            pr.append((dswr[sg - 2], 1))
                        if ins.startswith('buffer_store'):
                            pr.append(scl)
                            p = add(ins, cost, max(rel, scl.dl), max(dl, rel, scl.dl), pred=pr, tag='out')
                        else:
                            p = add(ins, cost, rel, max(dl, rel), pred=pr, kind='ds' if ins.startswith('ds_') else None)
                        if ins.startswith('v_mul'):
                            lm = p
                    dswr.append(p)
                    last_mul = lm
                half = a.split and prv['st'] >= 2
                if ((prv['st'] & 1) or half) and not (half and a.split == 2):
                    gend = start[si + 2] if (a.spread and si + 1 < len(stages) and not half) else g1
                    r0 = max(scl.dl, w0 + (w1 - w0) // 4)
                    nk = 4 if half else 8
                    for k in range(nk):
                        sg, hh = (k, 0) if half else (k >> 1, k & 1)
                        rd, stt = self.epi_r(prv, sg, hh, len(reads))
                        dl = r0 + (gend - 8 - r0) * (k + 1) // nk
                        pr = [dswr[sg]]
                        if len(stores) >= 2:
                            pr.append((stores[-2], 1))
                        if reads:
                            pr.append(reads[-1])
                        p1 = add(rd, 2, g0, max(dl - a.lgkmd - 2, g0), pred=pr, kind='ds')
                        reads.append(p1)
                        p2 = add('LGKM', 1, g0, max(dl - 1, g0), pred=[(p1, a.lgkmd)], kind='lgkm', tag=p1)
                        pr = [p2, scl]
                        if stores:
                            pr.append(stores[-1])
                        stores.append(add(stt, 2, scl.dl, max(dl, scl.dl), tag='out', pred=pr))
            gw = g0 + per * (a.wait0 if si == 0 else a.waitk)
            if nxt:
                p = add('WAIT', 1, gw, gw + 2, tag=('slot', 'scale'), kind='wait')
                for j, ins in enumerate(self.xads(nxt, buf ^ 1)):
                    p = add(ins, 1, gw, min(gw + 3 + j * per // 4, g0 + per * 17 - 5), pred=p)
                p = add('v_cmp_ne_u32 vcc, 0, v%d' % V_BAD, 1, gw, g0 + per * 17 - 3, pred=p)
                p = add('BRANCH', 1, gw, g0 + per * 17 - 1, pred=[(p, 1)], kind='branch', tag=(si + 1, nxt, buf ^ 1))
                branch_of[si + 1] = p
            else:
                p = add('WAIT', 1, gw, gw + 2, tag=('scale',), kind='wait')
                for j, ins in enumerate(self.unpacks(P)):
                    p = add(ins, 1, gw, gw + 4 + j * 2, pred=[p, last_mul] if j == 0 else p)
        brB = None
        if a.twophase:
            PF = dict(self.stage_params(*stages[0]), sb=8)
            n0 = a.twophase
            p = None
            for ins in self.slot_addr(PF):
                p = add(ins, 1, 0, 0, pred=p)
            for j, ins in enumerate(self.slot_loads(PF, 0)):
                if j >= n0:
                    p = add(ins, 2, 0, 1 + (j - n0), tag='slotB', pred=p)
            kB = 3 * (n0 // 2)
            gB = first_use[(0, kB - 1, 0)] - 8 * 2
            p = add('WAIT', 1, gB, gB + 1, tag=('slotB',), kind='wait', pred=p)
            for j in range(n0, 12):
                p = add('v_xad_u32 v%d, v%d, s%d, %s' % (V_BAD, V_SB[0] + 4 * j + 3, S_TAG, '0' if j == n0 else 'v%d' % V_BAD), 1, gB, gB + 2 + (j - n0), pred=p)
            p = add('v_cmp_ne_u32 vcc, 0, v%d' % V_BAD, 1, gB, first_use[(0, kB - 1, 0)] - 3, pred=p)
            brB = add('BRANCH', 1, gB, first_use[(0, kB - 1, 0)] - 1, pred=[(p, 1)], kind='branch', tag=(9, PF, 0))
        p = None
        for sx in range(a.xpre, 18):
            fu = first_use[(0, sx, 0)]
            for sg in range(4):
                p = add(self.x_read(sx, sg), 2, 0, max(0, fu - 8 * a.xahead + 2 * sg), pred=p, kind='ds')
            hard.append((add('LGKM', 1, max(0, fu - 3), fu - 2, pred=p, kind='lgkm', tag=p), fu - 1))
        for si, (kind, st) in enumerate(stages):
            P = self.stage_params(kind, st)
            buf = si & 1
            for s in range(18):
                if si == 0 and s == 0:
                    continue
                C = self.cvts(P, buf, s, s & 1)
                for t in range(P['nt']):
                    if s >= 2:
                        rel = last_use[(si, s - 2, t)]
                    else:
                        rel = last_use[(si - 1, 16 + s, t)] if si > 0 else 0
                    dl = first_use[(si, s, t)] - 3
                    p = branch_of[si] if (s < 2 and si > 0) else None
                    if si == 0 and brB is not None and s >= 3 * (a.twophase // 2):
                        p = brB
                    for j, ins in enumerate(C[t]):
                        p = add(ins, 1, rel, dl - (3 - j) // 2, pred=p, kind='cvt')
                        hard.append((p, first_use[(si, s, t)] - 1))
        self.lg = []
        overflow = 0
        pending = items
        for g, (mtext, si, s, t, sg) in enumerate(M):
            self.e(mtext)
            cap = 2
            while True:
                cand = [it for it in pending if not it.done and it.rel <= g and
                        all(p.done and p.gap + af <= g for p, af in it.pred)]
                if not cand:
                    break
                cand.sort(key=lambda it: it.dl)
                pick = None
                for it in cand:
                    if it.cost <= cap:
                        pick = it
                        break
                if pick is None:
                    forced = [it for it in cand if it.dl <= g]
                    if not forced:
                        break
                    pick = forced[0]
                    overflow += pick.cost
                self.emit_item(n, pick)
                pick.done = True
                pick.gap = g
                cap = max(0, cap - pick.cost)
            pending = [it for it in pending if not it.done]
            if a.defer and g + 1 == start[1]:
                self.e('s_cmp_eq_u32 s%d, 0' % S_DEF)
                self.e('s_cbranch_scc1 %s_defdone' % n)
                save = list(self.vm)
                self.pack_publish('%s_defdone' % n, deferred=True)
                self.vm = save
                self.e('s_nop 1')
            if g + 1 in start[1:]:
                self.stamp(2 + start.index(g + 1) - 1, 'B')
        while pending:
            cand = [it for it in pending if all(p.done for p, af in it.pred)]
            cand.sort(key=lambda it: it.dl)
            it = cand[0]
            assert it.kind not in ('cvt', 'branch'), it.text
            self.emit_item(n, it)
            it.done = True
            it.gap = len(M)
            pending = [x for x in pending if not x.done]
        for it, h in hard:
            assert it.gap <= h, (it.text, it.gap, h)
        self.overflow = overflow

    def emit_item(self, n, it):
        if it.kind == 'wait':
            self.e(self.wait_vm(*it.tag))
        elif it.kind == 'ds':
            self.e(it.text)
            self.lg.append(it)
        elif it.kind == 'lgkm':
            idx = self.lg.index(it.tag)
            self.e('s_waitcnt lgkmcnt(%d)' % min(15, len(self.lg) - 1 - idx) if self.a.cntlg else 's_waitcnt lgkmcnt(0)')
        elif it.kind == 'branch':
            tag, P, buf = it.tag
            self.e('s_cbranch_vccnz %s_retry%d' % (n, tag))
            self.e('%s_back%d:' % (n, tag))
            self.retry.append((tag, P, buf))
        elif it.tag in ('slot', 'slotB', 'scale', 'out', 'nb'):
            self.vmem(it.text, it.tag)
        else:
            self.e(it.text)

    def quad_tail(self, n, acs):
        a, e = self.a, self.e
        if a.qdirect:
            e('v_and_b32 v%d, 15, v%d' % (V_TR, V_LANE))
            e('v_mul_u32_u24 v%d, 9216, v%d' % (V_TR, V_TR))
            e('v_add_u32 v%d, v%d, v%d' % (V_TR, V_TR, V_CQ))
            e('s_lshl_b32 s%d, s%d, 5' % (S_T0, S_W))
            e('s_add_u32 s%d, s%d, 1024' % (S_T0, S_T0))
            e('v_add_u32 v%d, s%d, v%d' % (V_TR, S_T0, V_TR))
            for sg in range(4):
                ac = V_AC[acs] + 4 * sg
                o = (V_O + V_O2)[sg]
                for r in range(4):
                    e('v_mul_f32 v%d, v%d, v%d' % (ac + r, ac + r, V_SU + r))
                e('v_cvt_pk_bf16_f32 v%d, v%d, v%d' % (o, ac, ac + 1))
                e('v_cvt_pk_bf16_f32 v%d, v%d, v%d' % (o + 1, ac + 2, ac + 3))
                self.vmem('buffer_store_dwordx2 v[%d:%d], v%d, s[%d:%d], s%d offen%s' % (o, o + 1, V_TR, S_OUT, S_OUT + 3, S_O + sg, a.tflags), 'out')
            return
        e('s_nop 4')
        for sg in range(4):
            ac = V_AC[acs] + 4 * sg
            o = V_O[sg & 1]
            for r in range(4):
                e('v_mul_f32 v%d, v%d, v%d' % (ac + r, ac + r, V_SU + r))
            e('v_cvt_pk_bf16_f32 v%d, v%d, v%d' % (o, ac, ac + 1))
            e('v_cvt_pk_bf16_f32 v%d, v%d, v%d' % (o + 1, ac + 2, ac + 3))
            e('ds_write_b64 v%d, v[%d:%d] offset:%d' % (V_TWQ, o, o + 1, sg * 2048))
        e('%s_qbar:' % n)
        e('s_lshl_b32 s%d, s%d, 11' % (S_T0, S_W))
        e('s_add_u32 s%d, s%d, %d' % (S_T0, S_T0, LDS_Q))
        e('v_add_u32 v%d, s%d, v%d' % (V_TR, S_T0, V_S))
        e('s_waitcnt lgkmcnt(0)')
        e('s_barrier')
        for hh in range(2):
            e('ds_read_b128 v[%d:%d], v%d offset:%d' % (V_O2[hh], V_O2[hh] + 3, V_TR, hh * 1024))
        for hh in range(2):
            e('s_waitcnt lgkmcnt(%d)' % (1 - hh))
            self.vmem('buffer_store_dwordx4 v[%d:%d], v%d, s[%d:%d], s%d offen%s' % (
                V_O2[hh], V_O2[hh] + 3, V_OOB if hh else V_OOA, S_OUT, S_OUT + 3, S_OQ, a.tflags), 'out')

    def dequant_pair(self, qa, qb, z, sc, dst, TM):
        e = self.e
        x0, x1 = TM, TM + 1
        e('v_cvt_f32_i32 v%d, v%d' % (x0, qa))
        e('v_cvt_f32_i32 v%d, v%d' % (x1, qb))
        e('v_cvt_pk_bf16_f32 v%d, v%d, v%d' % (x1, x0, x1))
        e('v_lshlrev_b32 v%d, 16, v%d' % (x0, x1))
        e('v_and_b32 v%d, 0xffff0000, v%d' % (x1, x1))
        e('v_sub_f32 v%d, v%d, v%d' % (x0, x0, z))
        e('v_sub_f32 v%d, v%d, v%d' % (x1, x1, z))
        e('v_cvt_pk_bf16_f32 v%d, v%d, v%d' % (x1, x0, x1))
        e('v_lshlrev_b32 v%d, 16, v%d' % (x0, x1))
        e('v_and_b32 v%d, 0xffff0000, v%d' % (x1, x1))
        e('v_mul_f32 v%d, v%d, v%d' % (x0, x0, sc))
        e('v_mul_f32 v%d, v%d, v%d' % (x1, x1, sc))
        e('v_cvt_pk_bf16_f32 v%d, v%d, v%d' % (dst, x0, x1))

    def fallback(self, n):
        a, e = self.a, self.e
        e('%s_fallback:' % n)
        e('s_waitcnt vmcnt(0) lgkmcnt(0)')
        S_J, S_K, S_COL = S_L0, S_L0 + 1, S_L0 + 2
        A = V_AC[0]
        QV, FA, XF, ZS, TM = 36, 52, 60, 76, 80
        VO, VQ, VZ, V_I, V_G = 84, 85, 86, 87, 88
        e('v_and_b32 v%d, 15, v%d' % (V_I, V_LANE))
        e('v_lshrrev_b32 v%d, 4, v%d' % (V_G, V_LANE))
        self.vmem('buffer_atomic_add v%d, v%d, s[%d:%d], 0 offen sc1' % (V_NBV, V_NBO, S_WS, S_WS + 3), 'nb')
        e('v_mul_u32_u24 v%d, 9216, v%d' % (VO, V_I))
        e('v_add_u32 v%d, v%d, v%d' % (VO, VO, V_C))
        e('s_mov_b32 s%d, 0' % S_J)
        e('%s_fb_job:' % n)
        e('s_lshr_b32 s%d, s%d, 1' % (S_T0, S_J))
        e('s_lshl_b32 s%d, s%d, 3' % (S_T0, S_T0))
        e('s_and_b32 s%d, s%d, 1' % (S_T1, S_J))
        e('s_add_u32 s%d, s%d, s%d' % (S_T0, S_T0, S_T1))
        e('s_lshl_b32 s%d, s%d, 1' % (S_T1, S_W))
        e('s_add_u32 s%d, s%d, s%d' % (S_P, S_T0, S_T1))
        e('s_lshl_b32 s%d, s%d, 5' % (S_T0, S_P))
        e('s_lshl_b32 s%d, s%d, 4' % (S_T1, S_W))
        e('s_add_u32 s%d, s%d, 512' % (S_T1, S_T1))
        e('s_cmp_lt_u32 s%d, 4' % S_J)
        e('s_cselect_b32 s%d, s%d, s%d' % (S_T0, S_T0, S_T1))
        e('s_cselect_b32 s%d, 3, 2' % S_T2)
        e('s_mul_i32 s%d, s%d, 576' % (S_COL, S_CB))
        e('s_add_u32 s%d, s%d, s%d' % (S_COL, S_COL, S_T0))
        e('v_lshlrev_b32 v%d, s%d, v%d' % (VQ, S_T2, V_I))
        e('v_lshrrev_b32 v%d, 1, v%d' % (VZ, VQ))
        e('v_mul_u32_u24 v%d, 147456, v%d' % (TM, V_G))
        e('v_add_u32 v%d, v%d, v%d' % (VQ, VQ, TM))
        e('s_lshl_b32 s%d, s%d, 1' % (S_T0, S_COL))
        e('s_cmp_lt_u32 s%d, 4' % S_J)
        e('s_cbranch_scc0 %s_fb_zq' % n)
        e('buffer_load_dword v%d, v%d, s[%d:%d], s%d offen' % (TM, VZ, S_ZP, S_ZP + 3, S_T0))
        e('buffer_load_dword v%d, v%d, s[%d:%d], s%d offen' % (TM + 1, VZ, S_SC, S_SC + 3, S_T0))
        e('s_branch %s_fb_zok' % n)
        e('%s_fb_zq:' % n)
        e('buffer_load_ushort v%d, v%d, s[%d:%d], s%d offen' % (TM, VZ, S_ZP, S_ZP + 3, S_T0))
        e('buffer_load_ushort v%d, v%d, s[%d:%d], s%d offen' % (TM + 1, VZ, S_SC, S_SC + 3, S_T0))
        e('%s_fb_zok:' % n)
        for r in range(32):
            e('v_mov_b32 v%d, 0' % (A + r))
        e('s_waitcnt vmcnt(0)')
        e('v_lshlrev_b32 v%d, 16, v%d' % (ZS, TM))
        e('v_and_b32 v%d, 0xffff0000, v%d' % (ZS + 1, TM))
        e('v_lshlrev_b32 v%d, 16, v%d' % (ZS + 2, TM + 1))
        e('v_and_b32 v%d, 0xffff0000, v%d' % (ZS + 3, TM + 1))
        e('s_lshl_b32 s%d, s%d, 2' % (S_U, S_COL))
        e('s_mov_b32 s%d, 0' % S_K)
        e('%s_fb_k:' % n)
        for el in range(8):
            e('buffer_load_dwordx2 v[%d:%d], v%d, s[%d:%d], s%d offen' % (QV + 2 * el, QV + 2 * el + 1, VQ, S_QW, S_QW + 3, S_U))
            e('s_add_u32 s%d, s%d, %d' % (S_U, S_U, 18432 if el < 7 else 18432 * 25))
        e('s_lshr_b32 s%d, s%d, 1' % (S_T0, S_K))
        e('s_lshl_b32 s%d, s%d, 7' % (S_T0, S_T0))
        e('s_and_b32 s%d, s%d, 1' % (S_T1, S_K))
        e('s_lshl_b32 s%d, s%d, 6' % (S_T1, S_T1))
        e('v_add_u32 v%d, s%d, v%d' % (TM, S_T0, V_XB))
        e('v_xor_b32 v%d, s%d, v%d' % (TM, S_T1, TM))
        for sg in range(4):
            e('ds_read_b128 v[%d:%d], v%d offset:%d' % (XF + 4 * sg, XF + 4 * sg + 3, TM, sg * 18432))
        e('s_waitcnt vmcnt(0)')
        for t in range(2):
            for h in range(4):
                self.dequant_pair(QV + 2 * (2 * h) + t, QV + 2 * (2 * h + 1) + t, ZS + t, ZS + 2 + t, FA + 4 * t + h, TM + 2)
        e('s_waitcnt lgkmcnt(0)')
        e('s_nop 1')
        for t in range(2):
            for sg in range(4):
                ac = A + 16 * t + 4 * sg
                e('v_mfma_f32_16x16x32_bf16 v[%d:%d], v[%d:%d], v[%d:%d], v[%d:%d]' % (
                    ac, ac + 3, FA + 4 * t, FA + 4 * t + 3, XF + 4 * sg, XF + 4 * sg + 3, ac, ac + 3))
        e('s_add_u32 s%d, s%d, 1' % (S_K, S_K))
        e('s_cmp_lt_u32 s%d, 18' % S_K)
        e('s_cbranch_scc1 %s_fb_k' % n)
        e('s_nop 7')
        e('s_nop 1')
        e('s_cmp_lt_u32 s%d, 4' % S_J)
        e('s_cbranch_scc0 %s_fb_quad' % n)
        e('s_lshl_b32 s%d, s%d, 6' % (S_T0, S_P))
        for sg in range(4):
            o = V_O[sg & 1]
            for r in range(4):
                e('v_cvt_pk_bf16_f32 v%d, v%d, v%d' % (o + r, A + 4 * sg + r, A + 16 + 4 * sg + r))
            e('s_add_u32 s%d, s%d, s%d' % (S_T1, S_O + sg, S_T0))
            e('buffer_store_dwordx4 v[%d:%d], v%d, s[%d:%d], s%d offen' % (o, o + 3, VO, S_OUT, S_OUT + 3, S_T1))
        e('s_waitcnt vmcnt(0)')
        e('s_add_u32 s%d, s%d, 1' % (S_J, S_J))
        e('s_branch %s_fb_job' % n)
        e('%s_fb_quad:' % n)
        if a.qdirect:
            e('v_mul_u32_u24 v%d, 9216, v%d' % (VO, V_I))
            e('v_add_u32 v%d, v%d, v%d' % (VO, VO, V_CQ))
            e('s_lshl_b32 s%d, s%d, 5' % (S_T0, S_W))
            e('s_add_u32 s%d, s%d, 1024' % (S_T0, S_T0))
            e('v_add_u32 v%d, s%d, v%d' % (VO, S_T0, VO))
            for sg in range(4):
                o = (V_O + V_O2)[sg]
                e('v_cvt_pk_bf16_f32 v%d, v%d, v%d' % (o, A + 4 * sg, A + 4 * sg + 1))
                e('v_cvt_pk_bf16_f32 v%d, v%d, v%d' % (o + 1, A + 4 * sg + 2, A + 4 * sg + 3))
                e('buffer_store_dwordx2 v[%d:%d], v%d, s[%d:%d], s%d offen' % (o, o + 1, VO, S_OUT, S_OUT + 3, S_O + sg))
            e('s_endpgm')
            return
        for sg in range(4):
            o = V_O[sg & 1]
            e('v_cvt_pk_bf16_f32 v%d, v%d, v%d' % (o, A + 4 * sg, A + 4 * sg + 1))
            e('v_cvt_pk_bf16_f32 v%d, v%d, v%d' % (o + 1, A + 4 * sg + 2, A + 4 * sg + 3))
            e('ds_write_b64 v%d, v[%d:%d] offset:%d' % (V_TWQ, o, o + 1, sg * 2048))
        e('s_branch %s_qbar' % n)

    def write_stamps(self):
        if not self.a.stamps:
            return
        e = self.e
        e('s_waitcnt lgkmcnt(0)')
        for k in range(8):
            e('v_mov_b32 v%d, s%d' % (36 + k, S_STAMP + 2 * k))
        e('s_lshl_b32 s%d, s2, 2' % S_T0)
        e('s_add_u32 s%d, s%d, s%d' % (S_T0, S_T0, S_W))
        e('s_lshl_b32 s%d, s%d, 5' % (S_T0, S_T0))
        e('s_add_u32 s%d, s%d, %d' % (S_T0, S_T0, WS_STAMP))
        e('v_mov_b32 v1, 0')
        e('s_mov_b64 exec, 1')
        e('buffer_store_dwordx4 v[36:39], v1, s[%d:%d], s%d offen' % (S_WS, S_WS + 3, S_T0))
        e('buffer_store_dwordx4 v[40:43], v1, s[%d:%d], s%d offen offset:16' % (S_WS, S_WS + 3, S_T0))
        e('s_mov_b64 exec, -1')

    def descriptor(self, name, vg, ac):
        e = self.e
        e('.section .rodata,"a"')
        e('.p2align 6')
        e('.amdhsa_kernel %s' % name)
        e('  .amdhsa_next_free_vgpr %d' % vg)
        e('  .amdhsa_next_free_sgpr 96')
        e('  .amdhsa_accum_offset %d' % ac)
        e('  .amdhsa_group_segment_fixed_size 0')
        e('  .amdhsa_float_denorm_mode_32 3')
        e('  .amdhsa_kernarg_size 56')
        e('  .amdhsa_user_sgpr_count 2')
        e('  .amdhsa_user_sgpr_kernarg_segment_ptr 1')
        e('  .amdhsa_system_sgpr_workgroup_id_x 1')
        e('.end_amdhsa_kernel')

    def kernel(self, name):
        a, e = self.a, self.e
        e('.text')
        e('.globl %s' % name)
        e('.p2align 8')
        e('.type %s,@function' % name)
        e('%s:' % name)
        n = 'K'
        stages = [('full', i) for i in range(4)] + [('quad', 0)]
        P0 = self.stage_params(*stages[0])
        if a.twophase:
            P0 = dict(P0, nslot=a.twophase)
        self.prologue0(n)
        if a.flow == 'bq':
            e('s_cmp_ge_u32 s%d, %d' % (S_W, a.nearly))
            e('s_cbranch_scc1 %s_late' % n)
            self.vm = []
            self.unit_loads()
            self.stamp(1, 'D')
            if a.pfearly:
                self.code_prefetch(n)
            self.x_offsets()
            self.prologue1(n)
            e('s_waitcnt lgkmcnt(0)')
            self.make_tag()
            e(self.wait_vm('unit') if a.pfearly == 2 else 's_waitcnt vmcnt(0)')
            self.stamp(2, 'D')
            self.pack_publish('%s_pubE' % n)
            self.stamp(2)
            self.stamp(3, 'D')
            if not a.pfearly:
                self.code_prefetch(n)
            self.x_dma(n)
            e('s_branch %s_nopub' % n)
            e('%s_late:' % n)
            self.vm = []
            if a.defer:
                e('s_cmp_eq_u32 s%d, 3' % S_W)
                e('s_cselect_b32 s%d, s%d, 0' % (S_DEF, S_HAS))
                e('s_cselect_b32 s%d, 0, s%d' % (S_HAS, S_HAS))
            if a.own:
                self.x_dma(n, 0, 1)
            e('s_cmp_eq_u32 s%d, 0' % S_HAS)
            e('s_cbranch_scc1 %s_nounit' % n)
            self.unit_loads()
            e('%s_nounit:' % n)
            self.stamp(1, 'D')
            if not a.own:
                self.x_offsets()
            self.x_dma(n, 1 if a.own else 0, 2)
            self.prologue1(n)
            e('s_waitcnt lgkmcnt(0)')
            self.make_tag()
            e('s_cmp_eq_u32 s%d, 0' % S_HAS)
            e('s_cbranch_scc1 %s_nopub' % n)
            e(self.wait_vm('unit'))
            self.stamp(2, 'D')
            self.pack_publish('%s_pubL' % n)
            self.stamp(2)
            self.stamp(3, 'D')
            e('s_waitcnt vmcnt(2)')
            e('s_cmp_eq_u32 s%d, 1' % S_HAS)
            e('s_cbranch_scc1 %s_xin' % n)
            e('%s_nopub:' % n)
            e('s_waitcnt vmcnt(0)')
            e('%s_xin:' % n)
            self.stamp(4, 'D')
            self.vm = []
            if not a.slotsafter:
                for ins in self.slot_addr(P0):
                    e(ins)
                for ins in self.slot_loads(P0, 0):
                    self.vmem(ins, 'slot')
            if a.defer and not a.slotsafter:
                e('v_mov_b32 v217, v%d' % V_PS)
                e('v_mov_b32 v218, v%d' % V_PS2)
                e('s_cmp_eq_u32 s%d, 0' % S_DEF)
                e('s_cbranch_scc1 %s_bar' % n)
                self.unit_loads(deferred=True)
            e('%s_bar:' % n)
        elif a.flow == 'bp':
            e('s_cmp_lg_u32 s%d, 0' % S_W)
            e('s_cbranch_scc1 %s_late' % n)
            self.vm = []
            self.unit_loads()
            self.stamp(1, 'D')
            self.prologue1(n)
            e('s_waitcnt lgkmcnt(0)')
            self.make_tag()
            e('s_waitcnt vmcnt(0)')
            self.stamp(2, 'D')
            self.pack_publish('%s_pubE' % n)
            self.stamp(2)
            self.stamp(3, 'D')
            self.code_prefetch(n)
            self.acquire_loop(n, P0, 0, '%s_acqw0' % n, '%s_w0ok' % n, fail='%s_w0fail' % n)
            e('%s_w0fail:' % n)
            e('s_mov_b32 s%d, 1' % S_FB)
            e('%s_w0ok:' % n)
            e('s_mov_b32 s%d, 2' % S_HAS)
            e('s_branch %s_bar' % n)
            e('%s_late:' % n)
            self.vm = []
            if a.own:
                self.x3_dma(n, 0, a.own)
            e('s_cmp_eq_u32 s%d, 0' % S_HAS)
            e('s_cbranch_scc1 %s_nounit' % n)
            self.unit_loads()
            e('%s_nounit:' % n)
            self.stamp(1, 'D')
            self.x3_dma(n, a.own, 8)
            self.prologue1(n)
            e('s_waitcnt lgkmcnt(0)')
            self.make_tag()
            e('s_cmp_eq_u32 s%d, 0' % S_HAS)
            e('s_cbranch_scc1 %s_nopub' % n)
            e(self.wait_vm('unit'))
            self.stamp(2, 'D')
            self.pack_publish('%s_pubL' % n)
            self.stamp(2)
            self.stamp(3, 'D')
            e('s_waitcnt vmcnt(2)')
            e('s_cmp_eq_u32 s%d, 1' % S_HAS)
            e('s_cbranch_scc1 %s_xin' % n)
            e('%s_nopub:' % n)
            e('s_waitcnt vmcnt(0)')
            e('%s_xin:' % n)
            self.stamp(4, 'D')
            e('s_mov_b32 s%d, 0' % S_HAS)
            self.vm = []
            for ins in self.slot_addr(P0):
                e(ins)
            for ins in self.slot_loads(P0, 0):
                self.vmem(ins, 'slot')
            e('%s_bar:' % n)
        else:
            self.vm = []
            if a.xwarm:
                e('s_cmp_lg_u32 s%d, 3' % S_W)
                e('s_cbranch_scc1 %s_nowarm' % n)
                self.x_warm()
                e('%s_nowarm:' % n)
            e('s_cmp_eq_u32 s%d, 0' % S_HAS)
            e('s_cbranch_scc1 %s_nounit' % n)
            self.unit_loads()
            e('%s_nounit:' % n)
            self.stamp(1, 'D')
            self.x_offsets()
            self.prologue1(n)
            e('s_waitcnt lgkmcnt(0)')
            self.make_tag()
            e('s_cmp_eq_u32 s%d, 0' % S_HAS)
            e('s_cbranch_scc1 %s_pub' % n)
            e('s_waitcnt vmcnt(0)')
            self.stamp(2, 'D')
            self.pack_publish('%s_pub' % n)
            self.stamp(2)
            self.stamp(3, 'D')
            self.vm = []
            self.code_prefetch(n)
            self.x_dma(n)
            self.stamp(4, 'D')
            for ins in self.slot_addr(P0):
                e(ins)
            for ins in self.slot_loads(P0, 0):
                self.vmem(ins, 'slot')
            e(self.wait_vm('xdma'))
            e('%s_bar:' % n)
        self.stamp(5, 'D')
        e('s_barrier')
        self.stamp(3)
        self.stamp(6, 'D')
        if a.slotsafter:
            for ins in self.slot_addr(P0):
                e(ins)
            for ins in self.slot_loads(P0, 0):
                self.vmem(ins, 'slot')
            if a.defer:
                e('v_mov_b32 v217, v%d' % V_PS)
                e('v_mov_b32 v218, v%d' % V_PS2)
                e('s_cmp_eq_u32 s%d, 0' % S_DEF)
                e('s_cbranch_scc1 %s_nodef' % n)
                self.unit_loads(deferred=True)
                e('%s_nodef:' % n)
        for s in range(a.xpre):
            for sg in range(4):
                e(self.x_read(s, sg))
        if a.flow == 'bp':
            e('s_cmp_lg_u32 s%d, 0' % S_FB)
            e('s_cbranch_scc1 %s_fallback' % n)
            e('s_cmp_eq_u32 s%d, 2' % S_HAS)
            e('s_cbranch_scc1 %s_back0' % n)
        if a.defer:
            e('s_waitcnt vmcnt(25)')
            e('s_cmp_lg_u32 s%d, 0' % S_DEF)
            e('s_cbranch_scc1 %s_w25' % n)
        e('s_waitcnt vmcnt(0)')
        if a.defer:
            e('%s_w25:' % n)
        for ins in self.xads(P0, 0):
            e(ins)
        e('v_cmp_ne_u32 vcc, 0, v%d' % V_BAD)
        e('s_cbranch_vccz %s_back0' % n)
        self.stamp(4)
        self.acquire_loop(n, P0, 0, '%s_acq0' % n, '%s_back0' % n)
        e('%s_back0:' % n)
        self.stamp(5)
        self.stamp(7, 'D')
        self.stamp(1, 'B')
        C = self.cvts(P0, 0, 0, 0)
        for c in C[0] + C[1]:
            e(c)
        e('s_waitcnt lgkmcnt(0)')
        self.vm = []
        self.main_loop(n, stages)
        self.stamp(6)
        self.quad_tail(n, (len(stages) - 1) & 1)
        if a.stamps:
            e('s_waitcnt vmcnt(0)')
            self.stamp(7)
            self.stamp(7, 'B')
        self.write_stamps()
        e('%s_done:' % n)
        e('s_endpgm')
        for tag, P, buf in self.retry:
            self.acquire_loop(n, P, buf, '%s_retry%d' % (n, tag), '%s_back%d' % (n, tag))
        self.fallback(n)
        e('%s_end:' % n)
        e('s_nop 0')
        self.descriptor(name, 512, 256)

    def aux_kernels(self):
        e = self.e
        e('.text\n.globl blocker_kernel\n.p2align 8\n.type blocker_kernel,@function\nblocker_kernel:')
        e('s_cmp_ge_u32 s2, 1\ns_cbranch_scc1 B_done\ns_memrealtime s[18:19]\ns_waitcnt lgkmcnt(0)\ns_add_u32 s20, s18, 6000')
        e('B_spin:\ns_memrealtime s[18:19]\ns_waitcnt lgkmcnt(0)\ns_sub_u32 s21, s18, s20\ns_cmp_lt_i32 s21, 0\ns_cbranch_scc1 B_spin')
        e('B_done:\ns_endpgm')
        self.descriptor('blocker_kernel', 16, 16)
        e('.text\n.globl stamp_kernel\n.p2align 8\n.type stamp_kernel,@function\nstamp_kernel:')
        e('s_memrealtime s[60:61]\ns_cmp_ge_u32 s2, 1\ns_cbranch_scc1 S_done\ns_load_dwordx2 s[16:17], s[0:1], 48\ns_waitcnt lgkmcnt(0)')
        e('s_mov_b32 s40, s16\ns_mov_b32 s41, s17\ns_mov_b32 s42, %d\ns_mov_b32 s43, 0x00020000' % WS_BYTES)
        e('v_mov_b32 v4, s60\nv_mov_b32 v8, %d' % (WS_STAMP + 0x10000))
        e('v_cmp_eq_u32 vcc, 0, v0\ns_and_saveexec_b64 s[72:73], vcc\ns_cbranch_execz S_done')
        e('buffer_store_dword v4, v8, s[40:43], 0 offen')
        e('S_done:\ns_endpgm')
        self.descriptor('stamp_kernel', 16, 16)

    def build(self):
        a = self.a
        H = [
            '; Kernarg layout for this problem (56 bytes, ptrs only, base s[0:1]):',
            ';   offset   0: d_in[0] x  shape=(1, 2048, 576) dtype=bfloat16',
            ';   offset   8: d_in[1] qw  shape=(576, 4608) dtype=int32',
            ';   offset  16: d_in[2] scales  shape=(1, 4608) dtype=bfloat16',
            ';   offset  24: d_in[3] zeros  shape=(1, 4608) dtype=bfloat16',
            ';   offset  32: d_out     shape=(1, 2048, 4608) dtype=bfloat16',
            ';   offset  40: d_debug   256 bytes (unused)',
            ';   offset  48: d_ws      268435456 bytes workspace',
            ';',
            '; out = x @ ((qw - zeros) * scales), M=2048 K=576 N=4608.  Hand-designed schedule, text emitted by my own script.',
            '; One workgroup (4 waves, 512 registers each) per CU owns a 64 x 576 output tile; id -> (row block, column block).',
            ';  1. The int32 weights are read once: every wave packs a "unit" (128 columns x 24 k rows) into FP4 codes of',
            ';     q - zero (exact for 2-bit q and integral zero points, checked at run time) and writes it through to d_ws',
            ';     in 16-byte slots {3 fragment dwords, tag}.  The tag is a hash of a launch counter kept in d_ws, so a slot',
            ';     of this launch is told from whatever was there before; consumers validate the tags of everything they use.',
            ';  2. The x tile is copied to LDS (LDS-DMA, swizzled) and kept as MFMA B fragments in 288 registers per wave.',
            ';  3. Five stages per wave (4 x 32 columns, 1 x 16 columns): slots -> v_cvt_scalef32_pk_bf16_fp4 -> 16x16x32 bf16',
            ';     MFMA with fp32 sums; the next stage is prefetched and validated, the previous one is scaled, rounded,',
            ';     transposed through LDS and stored in the gaps between the MFMAs.',
            ';  4. If a slot does not become valid (values outside the 2-bit range, or a producer that is not running yet),',
            ';     the wave recomputes its columns from the int32 weights with the generic dequantisation (K_fallback).',
        ]
        if a.wrap:
            H.append('; @launch kernel=blocker_kernel grid=(1,1,1) block=(64,1,1) lds=0')
            H.append('; @launch kernel=%s grid=(256,1,1) block=(256,1,1) lds=%d' % (KN, LDS_BYTES))
            H.append('; @launch kernel=stamp_kernel grid=(1,1,1) block=(64,1,1) lds=0')
        else:
            H.append('; @launch grid=(256,1,1) block=(256,1,1) lds=%d' % LDS_BYTES)
        H.append('.amdgcn_target "amdgcn-amd-amdhsa--gfx950"')
        self.kernel(KN)
        if a.wrap:
            self.aux_kernels()
        body = []
        for l in self.L:
            for ll in l.split('\n'):
                if ll.endswith(':') or ll.startswith('.') or ll.startswith('  .'):
                    body.append(ll)
                else:
                    body.append('    ' + ll)
        return '\n'.join(H + body) + '\n'


def main():
    ap = argparse.ArgumentParser()
    ap.add_argument('-o', default='h7.s')
    ap.add_argument('--stamps', action='store_true')
    ap.add_argument('--stampset', default='A')
    ap.add_argument('--wrap', action='store_true')
    ap.add_argument('--pf', type=int, default=2)
    ap.add_argument('--warm', type=int, default=1)
    ap.add_argument('--qnt', type=int, default=1)
    ap.add_argument('--xnt', type=int, default=0)
    ap.add_argument('--oflags', default='sc1')
    ap.add_argument('--morder', default='t')
    ap.add_argument('--limit', type=int, default=4096)
    ap.add_argument('--ldspan', type=float, default=0.3)
    ap.add_argument('--epiend', type=float, default=0.78)
    ap.add_argument('--waitk', type=int, default=14)
    ap.add_argument('--spread', type=int, default=1)
    ap.add_argument('--ld0', type=int, default=3)
    ap.add_argument('--ldspan0', type=float, default=0.2)
    ap.add_argument('--wait0', type=int, default=15)
    ap.add_argument('--xpre', type=int, default=3)
    ap.add_argument('--xahead', type=int, default=3)
    ap.add_argument('--lgkmd', type=int, default=5)
    ap.add_argument('--cntlg', type=int, default=1)
    ap.add_argument('--xwarm', type=int, default=1)
    ap.add_argument('--flow', default='bp')
    ap.add_argument('--own', type=int, default=1)
    ap.add_argument('--split', type=int, default=0)
    ap.add_argument('--nearly', type=int, default=1)
    ap.add_argument('--defer', type=int, default=0)
    ap.add_argument('--nohint', type=int, default=0)
    ap.add_argument('--qdirect', type=int, default=0)
    ap.add_argument('--slotsafter', type=int, default=0)
    ap.add_argument('--twophase', type=int, default=0)
    ap.add_argument('--pfearly', type=int, default=0)
    ap.add_argument('--tflags', default='sc1')
    a = ap.parse_args()
    a.oflags = '' if a.oflags == 'none' else ' ' + a.oflags.replace('+', ' ')
    a.tflags = '' if a.tflags == 'none' else ' ' + a.tflags.replace('+', ' ')
    g = Gen(a)
    s = g.build()
    open(a.o, 'w').write(s)
    print(a.o, 'overflow slots', g.overflow)


if __name__ == '__main__':
    main()
```
